```python
import torch

def _softmax(x, axis=-1):
    return torch.softmax(x, dim=axis)
def _gelu(x):
    return torch.nn.functional.gelu(x, approximate="tanh")
def _silu(x):
    return torch.nn.functional.silu(x)
def _sigmoid(x):
    return torch.sigmoid(x)
def _layernorm(x, axis=-1, eps=1e-5):
    m = x.mean(dim=axis, keepdim=True)
    v = x.var(dim=axis, keepdim=True, unbiased=False)
    return (x - m) / torch.sqrt(v + eps)
def _scatter_add(tgt, idx, src, axis=0):
    return tgt.clone().index_add_(axis, idx, src)
def _segment_sum(src, seg, n):
    out = torch.zeros((n,) + src.shape[1:], dtype=src.dtype)
    return out.index_add_(0, seg, src)
def _pad(x, pw):
    flat = tuple(v for pair in reversed(pw) for v in pair)
    return torch.nn.functional.pad(x, flat)

kernel_name = 'recurrent_scan__mha_block__moe_arch_mod__prompt'

def setup_inputs():

    _w = (lambda a: (lambda t: t.to(torch.bfloat16) if t.is_floating_point() else t)(torch.as_tensor(a)))
    def _A_setup():
        B, S, D, H = 1, 2048, 512, 32
        return {
            "x": _w((lambda *s: torch.randn(*s, dtype=torch.bfloat16) * 0.05)(B, S, D)),
            "wqkv": _w((lambda *s: torch.randn(*s, dtype=torch.bfloat16) * 0.05)(D, 3 * D)),
            "wo": _w((lambda *s: torch.randn(*s, dtype=torch.bfloat16) * 0.05)(D, D)),
        }
    _A_in = _A_setup()

    def _B_setup():
        B, S, D, F, C = 1, 2048, 512, 1792, 8
        return {
            "x": _w((lambda *s: torch.randn(*s, dtype=torch.bfloat16) * 0.05)(B, S, D)),
            "w_r": _w((lambda *s: torch.randn(*s, dtype=torch.bfloat16) * 0.05)(D)),
            "w_gate": _w((lambda *s: torch.randn(*s, dtype=torch.bfloat16) * 0.05)(D, F)),
            "w_up": _w((lambda *s: torch.randn(*s, dtype=torch.bfloat16) * 0.05)(D, F)),
            "w_down": _w((lambda *s: torch.randn(*s, dtype=torch.bfloat16) * 0.05)(F, D)),
        }
    _B_in = _B_setup()

    return {
        "A_x": _A_in["x"],
        "A_wqkv": _A_in["wqkv"],
        "A_wo": _A_in["wo"],
        "B_x": _B_in["x"],
        "B_w_r": _B_in["w_r"],
        "B_w_gate": _B_in["w_gate"],
        "B_w_up": _B_in["w_up"],
        "B_w_down": _B_in["w_down"],
    }

def reference(A_x, A_wqkv, A_wo, B_x, B_w_r, B_w_gate, B_w_up, B_w_down):
    def _A_ref(x, wqkv, wo):
        B, S, D = x.shape
        H = 32
        Dh = D // H
        qkv = (lambda x, *d: x.permute(*d))((x @ wqkv).reshape(B, S, 3, H, Dh), 2, 0, 3, 1, 4)
        q, k, v = qkv[0], qkv[1], qkv[2]
        scores = torch.einsum("bhqd,bhkd->bhqk", q, k) * (Dh ** -0.5)
        p = _softmax(scores, axis=-1)
        o = torch.einsum("bhqk,bhkd->bhqd", p, v)
        return (lambda x, *d: x.permute(*d))(o, 0, 2, 1, 3).reshape(B, S, D) @ wo

    def _B_ref(x, w_r, w_gate, w_up, w_down):
        B, S, D = x.shape
        C = 8
        r = x @ w_r
        idx = torch.argsort(-r, axis=-1)[:, :C]
        idx_e = (lambda x, n, axis: torch.repeat_interleave(x, n, dim=axis))(idx.reshape(B, C, 1), D, axis=2)
        x_sel = (lambda x, i, axis: torch.take_along_dim(x, i, dim=axis))(x, idx_e, axis=1)
        g = _silu(x_sel @ w_gate)
        u = x_sel @ w_up
        y = (g * u) @ w_down
        r_sel = _sigmoid((lambda x, i, axis: torch.take_along_dim(x, i, dim=axis))(r, idx, axis=1))
        y = y * r_sel.reshape(B, C, 1)
        b_off = (torch.arange(B) * S).reshape(B, 1)
        flat_idx = (idx + b_off).reshape(B * C)
        zero = (x * 0.0).reshape(B * S, D)
        upd = _scatter_add(zero, flat_idx, y.reshape(B * C, D), axis=0)
        return x + upd.reshape(B, S, D)

    x = A_x
    xn = _layernorm(x, axis=-1)
    s = _A_ref(xn, A_wqkv, A_wo)
    g = _silu(_B_ref(xn, B_w_r, B_w_gate, B_w_up, B_w_down))
    return x + s * g
```

```python
import re

TRANS = ("v_exp_f32","v_log_f32","v_rcp_f32","v_rsq_f32","v_sqrt_f32","v_sin_f32","v_cos_f32","v_exp_f16","v_rcp_iflag_f32")

def _regs(tok):
    tok = tok.strip()
    neg = tok.lstrip('-')
    m = re.fullmatch(r'abs\((.*)\)|\|(.*)\|', neg)
    if m: neg = m.group(1) or m.group(2)
    m = re.fullmatch(r'([vsa])(\d+)', neg)
    if m: return {(m.group(1), int(m.group(2)))}
    m = re.fullmatch(r'([vsa])\[(\d+):(\d+)\]', neg)
    if m: return {(m.group(1), i) for i in range(int(m.group(2)), int(m.group(3))+1)}
    if neg in ('vcc','vcc_lo','vcc_hi'): return {('x','vcc')}
    if neg in ('exec','exec_lo','exec_hi'): return {('x','exec')}
    if neg == 'm0': return {('x','m0')}
    return set()

class Ins:
    def __init__(self, text):
        self.text = text
        t = text.split(';')[0].strip()
        self.label = t.endswith(':')
        self.directive = t.startswith('.')
        self.op = '' if (self.label or self.directive or not t) else t.split()[0]
        self.real = bool(self.op)
        rest = t[len(self.op):].strip() if self.real else ''
        ops = [o.strip() for o in re.split(r',(?![^\[]*\])', rest)] if rest else []
        mods = []
        if ops:
            parts = ops[-1].split()
            ops[-1] = parts[0] if parts else ''
            mods = parts[1:]
        self.ops = ops; self.mods = mods
        op = self.op
        base = re.sub(r'_(e32|e64|dpp|sdwa)$', '', op)
        self.base = base
        self.w = set(); self.r = set()
        self.mfma = op.startswith('v_mfma')
        self.valu = op.startswith('v_')
        self.trans = base in TRANS
        self.dot = op.startswith('v_dot')
        self.dpp = op.endswith('_dpp') or any(m.startswith(('row_','quad_perm','wave_')) for m in mods)
        self.permlane = op.startswith('v_permlane')
        self.ds = op.startswith('ds_')
        self.vmem = op.startswith(('buffer_','global_'))
        self.salu = op.startswith('s_')
        self.srcC = set(); self.srcAB = set(); self.sdata=set()
        R = [ _regs(o) for o in ops ]
        if self.mfma:
            self.w = R[0]; self.srcAB = R[1]|R[2]; self.srcC = R[3]; self.r = self.srcAB|self.srcC
            self.passes = 8 if '32x32' in op else 4
        elif self.valu:
            if self.permlane and 'swap' in op:
                self.w = R[0]|R[1]; self.r = R[0]|R[1]
            elif base in ('v_add_co_u32','v_sub_co_u32','v_addc_co_u32','v_subb_co_u32','v_subrev_co_u32'):
                self.w = R[0]|R[1]; self.r = set().union(*R[2:])
            else:
                self.w = R[0]; self.r = set().union(*R[1:]) if len(R)>1 else set()
                if base in ('v_fmac_f32','v_dot2c_f32_bf16','v_writelane_b32') or self.dpp or 'UNUSED_PRESERVE' in text:
                    self.r |= R[0]
            self.r_implicit_exec = True
        elif self.ds:
            if base.startswith('ds_read') or '_rtn' in base or base.startswith(('ds_bpermute','ds_permute','ds_swizzle')):
                self.w = R[0]; self.r = set().union(*R[1:])
            else:
                self.r = set().union(*R)
        elif self.vmem:
            lds = 'lds' in mods or '_lds_' in op
            if 'load' in op and not lds:
                self.w = R[0]; self.r = set().union(*R[1:])
            elif 'atomic' in op and 'sc0' in mods:
                self.w = R[0]; self.r = set().union(*R)
            else:
                self.r = set().union(*R)
                if lds: self.r |= {('x','m0')}
                if 'store' in op and ('x4' in op or 'x3' in op):
                    self.sdata = R[0] if op.startswith('buffer') else R[1]
            self.ldsdma = lds
        elif self.salu:
            if base.startswith(('s_cmp','s_cbranch','s_branch','s_waitcnt','s_nop','s_barrier','s_setprio','s_sleep','s_endpgm','s_bitcmp','s_setpc')):
                self.r = set().union(*R) if R else set()
            else:
                self.w = R[0] if R else set(); self.r = set().union(*R[1:]) if len(R)>1 else set()
                if 'saveexec' in base: self.w |= {('x','exec')}
    def states(self):
        if self.op == 's_nop': return int(self.ops[0],0)+1
        return 1 if self.real else 0

def required(prod, cons):
    need = 0
    pw = prod.w
    pv = {x for x in pw if x[0] in 'va'}; ps = {x for x in pw if x[0]=='s' or x==('x','vcc')}
    if prod.mfma:
        n = 12 if prod.passes==8 else 8
        if cons.mfma:
            if pv & cons.srcAB: need = max(need, n)
            if pv & cons.srcC:
                if not (cons.srcC == pv and cons.passes==prod.passes): need = max(need, n-2)
            if (pv & cons.w) and not (cons.srcC == pv): need = max(need, n-2)
        elif cons.valu or cons.ds or cons.vmem:
            if pv & (cons.r | cons.w): need = max(need, n)
        if cons.valu and not cons.mfma and (prod.srcC & cons.w): need = max(need, 7 if prod.passes==8 else 3)
        return need
    if prod.valu:
        if cons.mfma and (pv & cons.r): need = max(need, 2)
        if cons.valu and not cons.mfma:
            if prod.trans and not cons.trans and (pv & cons.r): need = max(need, 1)
            if cons.dpp and (pv & cons.r): need = max(need, 2)
            if cons.permlane and (pv & cons.r): need = max(need, 2)
            if cons.base in ('v_readlane_b32','v_readfirstlane_b32') and (pv & cons.r): need = max(need, 1)
            if ps & cons.r:
                need = max(need, 4 if cons.base in ('v_readlane_b32','v_writelane_b32') else 2)
            if prod.dot and (pv & (cons.r|cons.w)):
                same_c = cons.op==prod.op and len(cons.ops)>3 and (pv & _regs(cons.ops[3])) and not (pv & (_regs(cons.ops[1])|_regs(cons.ops[2])))
                if not same_c: need = max(need, 3)
            if 'sdwa' in prod.op and (pv & cons.r): need = max(need,1)
        if prod.dot and (cons.ds or cons.vmem or cons.mfma) and (pv & cons.r): need = max(need,3)
        if prod.trans and (cons.ds or cons.vmem) and (pv & cons.r): need = max(need,1)
        if cons.vmem and (ps & cons.r): need = max(need, 5)
        if cons.salu and (ps & cons.r): need = max(need, 1)
        if cons.op.startswith('s_cbranch_vcc') and ('x','vcc') in ps: need = max(need, 1)
    if prod.salu:
        if ('x','m0') in pw and cons.vmem and getattr(cons,'ldsdma',False): need = max(need,1)
    if prod.vmem and prod.sdata:
        if cons.valu and (prod.sdata & cons.w): need = max(need,2)
        elif (cons.ds or cons.vmem) and (prod.sdata & cons.w): need = max(need,1)
    return need

def fix_hazards(lines, verbose=False):
    out = []
    ins_count = 0
    for t in lines:
        c = Ins(t)
        if c.real:
            dist = 0; need_pad = 0
            for p in reversed(out):
                if not p.real: continue
                if dist >= 13: break
                n = required(p, c)
                if n > dist: need_pad = max(need_pad, n-dist)
                if p.op in ('s_branch','s_setpc_b64','s_endpgm'): break
                dist += p.states()
            if need_pad:
                out.append(Ins("s_nop %d ; auto" % (need_pad-1))); ins_count += 1
                if verbose: print("pad %d before: %s" % (need_pad, t))
        out.append(c)
    return [i.text for i in out], ins_count

def check_seq(lines):
    seq=[Ins(t) for t in lines]; seq=[s for s in seq if s.real]
    bad=[]
    for i,c in enumerate(seq):
        dist=0
        for p in reversed(seq[max(0,i-14):i]):
            n=required(p,c)
            if n>dist: bad.append((p.text,c.text,n,dist))
            dist+=p.states()
    return bad

class Asm:
    def __init__(self):
        self.lines=[]
        self._uid=0
    def __call__(self, *ls):
        for l in ls:
            for x in l.split('\n'):
                x=x.strip()
                if x: self.lines.append(x)
    def label(self, name): self.lines.append(name+':')
    def uid(self, p='L'):
        self._uid+=1; return "%s_%d"%(p,self._uid)

def vr(a,n=1): return "v%d"%a if n==1 else "v[%d:%d]"%(a,a+n-1)
def sr(a,n=1): return "s%d"%a if n==1 else "s[%d:%d]"%(a,a+n-1)
```

```python
import sys, struct
from asmdsl import Asm, fix_hazards, check_seq, vr, sr

KNAME = "recurrent_scan__mha_block__moe_arch_mod__prompt_kernel"
PROF = '--prof' in sys.argv
FORCE_FB = '--force-fallback' in sys.argv
OUT = [a for a in sys.argv[1:] if not a.startswith('--')][0]

def f2u(x): return struct.unpack('<I', struct.pack('<f', x))[0]

WS_N=0; WS_FKV=0x1000; WS_FO=0x5000; WS_SEL=0x7000; WS_FF=0x7200; WS_XSEL=0x8000; WS_R=0xA000
WS_PART=0x10000; WS_KV=0x100000; WS_O=0x500000; WS_DBG=0x800000; WS_SIZE=0x1000000
L_WQK=16384; L_WV=49152; L_RING=65536; L_RT=131072+128; L_KEYS=131072; L_BOUNCE=139264
L_STM=155648; L_STR=L_STM+1024; L_MISC=157696; L_CS=L_MISC; L_KMAX=L_MISC+256; L_H=L_MISC+512; L_Y=158720
L_OST=0; L_SX=32768; SX_ROW=528; SX_HALF=32*SX_ROW
LDS_BYTES=163840
sX,sWQKV,sWS,sWO,sOUT,sWG,sWU,sWD,sWR,sDBG = 28,32,36,40,44,48,52,56,60,64
sNONCE=26; sH=68; sQB=69; sW=70; sTT=71; sCG=72
sT=[73,74,75,76,77,78,79]
sRET=80; sCNT=82; sSW=83; sJOB=84; sSIG=85; sPOLL=86; sFFN=87; sVMASK=88; sONES=90; sFB=91
sU=[92,93,94,95,96,97,98,99]
sPC=27
vTID=0; vLANE=1; vL16=2; vQN2=3; vKA=4; vVA=5; vT=[6,7,8,9]
vQ=10; vXP=14; vPC=18; vSTAMP=19
KF=[20,24]; VA=[28,36]; VB=[32,40]; vXN=44
S=[48,64]; P=80; vG=88; O=96; NEGM=112; WO=128; ST=192; vXF32=248

a = Asm()
def srd(s, ptr, size):
    a("s_mov_b32 s%d, s%d"%(s,ptr), "s_and_b32 s%d, s%d, 0xffff"%(s+1,ptr+1), "s_mov_b32 s%d, 0x%x"%(s+2,size), "s_mov_b32 s%d, 0x20000"%(s+3))
nstamp=[0]
def stamp(name):
    if not PROF: return
    k=nstamp[0]; nstamp[0]+=1
    a("s_memtime s[100:101] ; STAMP %d %s"%(k,name), "s_waitcnt lgkmcnt(0)", "v_writelane_b32 v%d, s100, %d"%(vSTAMP,k))
def bf16r(dst, src, tmp=None):
    a("v_cvt_pk_bf16_f32 v%d, v%d, v%d"%(dst,src,src), "v_lshlrev_b32 v%d, 16, v%d"%(dst,dst))
def unpack(lo, hi, src):
    a("v_lshlrev_b32 v%d, 16, v%d"%(lo,src), "v_and_b32 v%d, 0xffff0000, v%d"%(hi,src))
def mfma32(d,A,B,C):
    c = "0" if C is None else vr(C,16)
    return "v_mfma_f32_32x32x16_bf16 %s, %s, %s, %s"%(vr(d,16),vr(A,4),vr(B,4),c)
def mfma16(d,A,B,C):
    c = "0" if C is None else vr(C,4)
    return "v_mfma_f32_16x16x32_bf16 %s, %s, %s, %s"%(vr(d,4),vr(A,4),vr(B,4),c)

def poll(vdata, n, vaddr, soff, nlanes, code):
    L=a.uid('POLL'); D=a.uid('POLLD')
    op={1:"buffer_load_dword",2:"buffer_load_dwordx2"}[n]
    mask=(1<<nlanes)-1
    a("s_mov_b32 exec_lo, 0x%x"%(mask&0xffffffff), "s_mov_b32 exec_hi, 0x%x"%(mask>>32), "s_mov_b32 s%d, 0x8000"%sPOLL)
    a.label(L)
    a("%s %s, v%d, %s, %s offen sc1"%(op,vr(vdata,n),vaddr,sr(sWS,4),soff))
    a("s_waitcnt vmcnt(0)")
    a("v_cmp_ne_u32 vcc, s%d, v%d"%(sNONCE,vdata))
    if n==2 and code in (5,):
        a("v_cmp_ne_u32 s[%d:%d], s%d, v%d"%(sU[0],sU[1],sNONCE,vdata+1), "s_or_b64 vcc, vcc, s[%d:%d]"%(sU[0],sU[1]))
    a("s_cbranch_vccz %s"%D)
    a("s_sleep 1", "s_sub_u32 s%d, s%d, 1"%(sPOLL,sPOLL), "s_cmp_lg_u32 s%d, 0"%sPOLL, "s_cbranch_scc1 %s"%L)
    a("v_mov_b32 v%d, %d"%(vT[3],code), "v_mov_b32 v%d, 0"%vT[2], "buffer_store_dword v%d, v%d, %s, 0 offen"%(vT[3],vT[2],sr(sDBG,4)))
    a.label(D)
    a("s_mov_b64 exec, -1")

a.label(KNAME)
a("s_cmp_ge_u32 s2, 0x100", "s_cbranch_scc1 L_END")
a("s_load_dwordx16 s[4:19], s[0:1], 0", "s_load_dwordx4 s[20:23], s[0:1], 64", "s_load_dwordx2 s[24:25], s[0:1], 80")
if PROF:
    a("s_memrealtime s[100:101]", "s_waitcnt lgkmcnt(0)", "v_mov_b32 v%d, 0"%vSTAMP, "v_writelane_b32 v%d, s100, 63"%vSTAMP)
stamp("start")
a("s_and_b32 s73, s2, 7", "s_lshr_b32 s74, s2, 3",
  "s_and_b32 s75, s73, 3", "s_lshl_b32 s75, s75, 1", "s_and_b32 s76, s74, 1", "s_add_u32 s%d, s75, s76"%sQB,
  "s_lshr_b32 s75, s73, 2", "s_lshl_b32 s75, s75, 4", "s_lshr_b32 s76, s74, 1", "s_add_u32 s%d, s75, s76"%sH,
  "s_lshr_b32 s%d, s%d, 2"%(sTT,sH), "s_and_b32 s%d, s%d, 3"%(sCG,sH))
a("v_lshrrev_b32 v6, 6, v0", "v_and_b32 v%d, 63, v0"%vLANE, "v_readfirstlane_b32 s%d, v6"%sW, "v_lshlrev_b32 v%d, 4, v%d"%(vL16,vLANE))
a("s_mov_b32 s%d, 0xffff"%sVMASK, "s_mov_b32 s%d, 0xffff"%(sVMASK+1), "s_mov_b32 s%d, 0x3f803f80"%sONES)
vWRo=112; vWQd=113; vWVd=114; vXD=[115,116]; vXR=[117,118,119,120]; vAQb=121; vAVb=122; vAQ=123; vAV=124; vHH=125; vN=126; vTmp=127
a("v_lshlrev_b32 v%d, 1, v0"%vWRo)
a("v_lshrrev_b32 v6, 4, v0", "v_lshlrev_b32 v6, 10, v6", "v_and_b32 v7, 15, v0", "v_lshl_add_u32 v%d, v7, 4, v6"%vPC)
a("v_lshrrev_b32 v%d, 5, v1"%vHH, "v_and_b32 v%d, 31, v1"%vN)
a("s_movk_i32 s73, 3072")
a("v_lshrrev_b32 v6, 2, v1", "v_mul_lo_u32 v6, v6, s73", "v_bfe_u32 v7, v1, 1, 1", "v_lshl_add_u32 v6, v7, 10, v6", "v_and_b32 v7, 1, v1", "v_lshl_add_u32 v%d, v7, 4, v6"%vWQd)
a("v_lshrrev_b32 v6, 1, v1", "v_mul_lo_u32 v6, v6, s73", "v_lshl_add_u32 v%d, v7, 4, v6"%vWVd)
a("v_lshrrev_b32 v6, 4, v1", "v_and_b32 v7, 7, v1", "v_xor_b32 v6, v6, v7", "v_lshlrev_b32 v6, 4, v6", "v_lshrrev_b32 v7, 3, v1", "v_lshl_add_u32 v%d, v7, 10, v6"%vXD[0], "v_xor_b32 v%d, 64, v%d"%(vXD[1],vXD[0]))
a("s_lshl_b32 s74, s%d, 13"%sW, "s_add_u32 s74, s74, %d"%L_RING)
a("v_bfe_u32 v6, v1, 1, 3", "v_xor_b32 v6, v6, v%d"%vHH, "v_lshlrev_b32 v6, 4, v6", "v_lshl_add_u32 v6, v%d, 7, v6"%vN, "v_add_u32 v%d, s74, v6"%vXR[0])
for u in (1,2,3): a("v_xor_b32 v%d, %d, v%d"%(vXR[u],32*u,vXR[0]))
a("v_bfe_u32 v6, v1, 2, 2", "v_bfe_u32 v7, v1, 4, 1", "v_and_b32 v8, 3, v1")
a("v_lshlrev_b32 v9, 9, v%d"%vHH, "v_lshl_add_u32 v9, v6, 6, v9", "v_lshl_add_u32 v9, v7, 5, v9", "v_lshl_add_u32 v9, v8, 3, v9", "v_add_u32 v%d, %d, v9"%(vAQb,L_WQK))
a("v_lshlrev_b32 v9, 8, v%d"%vHH, "v_lshl_add_u32 v9, v6, 5, v9")
a("v_lshl_add_u32 v8, v8, 3, v9", "v_add_u32 v8, %d, v8"%L_WV, "v_add_u32 v9, %d, v9"%L_RT, "v_cmp_eq_u32 vcc, 1, v7", "v_cndmask_b32 v%d, v8, v9, vcc"%vAVb)
a("v_mov_b32 v%d, v%d"%(vKA,vL16))
a("v_and_b32 v6, 15, v1", "v_lshlrev_b32 v6, 4, v6", "v_lshl_add_u32 v6, v%d, 8, v6"%vHH, "v_add_u32 v%d, 1024, v6"%vVA)
a("v_mov_b32 v20, 0","v_mov_b32 v21, 0","v_mov_b32 v22, 0","v_mov_b32 v23, 0", "v_lshlrev_b32 v6, 4, v0", "v_add_u32 v6, %d, v6"%L_MISC)
a("s_cmp_ge_u32 s%d, 5"%sW, "s_cbranch_scc1 L_NOZERO", "ds_write_b128 v6, v[20:23]")
a.label("L_NOZERO")
a("s_waitcnt lgkmcnt(0)")
a("s_load_dword s%d, s[24:25], 0"%sNONCE)
srd(sWR,12,1024); srd(sX,4,2048*1024); srd(sWQKV,6,512*3072)
a("s_lshl_b32 s75, s%d, 3"%sQB, "s_add_u32 s75, s75, s%d"%sTT, "s_lshl_b32 s75, s75, 15", "s_lshl_b32 s76, s%d, 8"%sCG, "s_add_u32 s%d, s75, s76"%sPC)
a("buffer_load_ushort v6, v%d, %s, 0 offen"%(vWRo,sr(sWR,4)))
a("buffer_load_dwordx4 %s, v%d, %s, s%d offen"%(vr(vXP,4),vPC,sr(sX,4),sPC))
a("s_lshl_b32 s75, s%d, 5"%sH)
a("s_mul_i32 s76, s%d, %d"%(sW,4*16*3072), "s_add_u32 s76, s76, s75", "s_lshl_b32 s77, s%d, 12"%sW, "s_add_u32 s77, s77, %d"%L_WQK)
for b in range(4):
    a("s_mov_b32 m0, s77", "s_add_u32 s77, s77, 1024", "buffer_load_dwordx4 v%d, %s, s76 offen lds"%(vWQd,sr(sWQKV,4)), "s_add_u32 s76, s76, %d"%(16*3072))
a("s_mul_i32 s76, s%d, %d"%(sW,2*32*3072), "s_add_u32 s76, s76, s75", "s_add_u32 s76, s76, 2048", "s_lshl_b32 s77, s%d, 11"%sW, "s_add_u32 s77, s77, %d"%L_WV)
for b in range(2):
    a("s_mov_b32 m0, s77", "s_add_u32 s77, s77, 1024", "buffer_load_dwordx4 v%d, %s, s76 offen lds"%(vWVd,sr(sWQKV,4)), "s_add_u32 s76, s76, %d"%(32*3072))
a("s_lshl_b32 s78, s%d, 3"%sQB, "s_add_u32 s78, s78, s%d"%sW, "s_lshl_b32 s78, s78, 15")
a("s_and_b32 s%d, s%d, 7"%(sSIG,sH))
def xdma(sig_reg, slot):
    a("s_lshl_b32 s76, s%d, 7"%sig_reg, "s_add_u32 s76, s76, s78", "s_add_u32 s77, s74, %d"%(slot*4096))
    for g in range(4):
        a("s_mov_b32 m0, s77")
        a("s_add_u32 s77, s77, 1024")
        a("buffer_load_dwordx4 v%d, %s, s76 offen lds"%(vXD[g&1],sr(sX,4)))
        if g<3: a("s_add_u32 s76, s76, 8192")
xdma(sSIG,0)
a("s_add_u32 s79, s%d, 1"%sSIG, "s_and_b32 s79, s79, 7")
xdma(79,1)
srd(sWS,24,WS_SIZE); srd(sWO,8,512*1024); srd(sOUT,20,2048*1024); srd(sWG,14,512*3584); srd(sWU,16,512*3584); srd(sWD,18,1792*1024); srd(sDBG,22,256)
a("s_cmp_lt_u32 s2, 56", "s_cselect_b32 s%d, 1, 0"%sFFN)
XF=20; WQ=36; WV=52; AQK=68; AV=96; sA=[84,85,86,87]; sB=[88,89,90,91]
for i in range(16): a("v_mov_b32 v%d, 0"%(AQK+i), "v_mov_b32 v%d, 0"%(AV+i))
for r in sA+sB: a("v_mov_b32 v%d, 0"%r)
a("s_waitcnt vmcnt(15) lgkmcnt(0)")
a("s_mul_i32 s%d, s%d, 0x9E3779B1"%(sNONCE,sNONCE), "s_add_u32 s%d, s%d, 0x7F4A7C15"%(sNONCE,sNONCE))
a("v_or_b32 v6, 0x3f800000, v6", "v_mov_b32 v7, 0", "v_lshlrev_b32 v8, 5, v0", "v_add_u32 v8, %d, v8"%L_RT, "ds_write_b64 v8, v[6:7]")
a("s_waitcnt vmcnt(8) lgkmcnt(0)", "s_barrier")
stamp("W landed")
def wreads(us):
    for u in us:
        a("ds_read_b64_tr_b16 %s, v%d offset:%d"%(vr(WQ+4*u,2),vAQ,u*1024), "ds_read_b64_tr_b16 %s, v%d offset:%d"%(vr(WQ+4*u+2,2),vAQ,u*1024+256))
        a("ds_read_b64_tr_b16 %s, v%d offset:%d"%(vr(WV+4*u,2),vAV,u*512), "ds_read_b64_tr_b16 %s, v%d offset:%d"%(vr(WV+4*u+2,2),vAV,u*512+128))
def waddr(sreg):
    a("s_lshl_b32 s76, s%d, 12"%sreg, "s_lshl_b32 s77, s%d, 11"%sreg, "v_add_u32 v%d, s76, v%d"%(vAQ,vAQb), "v_add_u32 v%d, s77, v%d"%(vAV,vAVb))
waddr(sW)
wreads((0,1,2)); a("s_waitcnt lgkmcnt(4)"); wreads((3,))
a("v_mov_b32 v6, 0","v_mov_b32 v7, 0","v_mov_b32 v8, 0","v_mov_b32 v9, 0")
a("s_waitcnt lgkmcnt(0)")
for j in range(16):
    a("v_dot2_f32_bf16 v%d, v%d, s%d, v%d"%(6+(j&1),WQ+j,sONES,6+(j&1)), "v_dot2_f32_bf16 v%d, v%d, s%d, v%d"%(8+(j&1),WV+j,sONES,8+(j&1)))
a("v_add_f32 v6, v6, v7", "v_add_f32 v8, v8, v9", "v_lshlrev_b32 v7, 2, v%d"%vN, "v_add_u32 v7, %d, v7"%L_CS)
a("ds_add_f32 v7, v6", "ds_add_f32 v7, v8 offset:128", "s_waitcnt lgkmcnt(0)", "s_barrier")
stamp("colsum")
def stage(slot, last_wait_label=False):
    waddr(sSIG)
    if slot==0:
        a("s_waitcnt vmcnt(4)")
    else:
        a("s_cmp_eq_u32 s%d, 1"%sCNT, "s_cbranch_scc1 L_G_W0", "s_waitcnt vmcnt(4)", "s_branch L_G_W1")
        a.label("L_G_W0"); a("s_waitcnt vmcnt(0)"); a.label("L_G_W1")
    for u in range(4): a("ds_read_b128 %s, v%d offset:%d"%(vr(XF+4*u,4),vXR[u],slot*4096))
    wreads((0,1))
    a("s_waitcnt lgkmcnt(8)")
    L=a.uid("L_G_ND")
    a("s_cmp_eq_u32 s%d, 1"%sCNT, "s_cbranch_scc1 %s"%L)
    a("s_add_u32 s79, s%d, 2"%sSIG, "s_and_b32 s79, s79, 7")
    xdma(79,slot)
    a.label(L)
    a("s_waitcnt lgkmcnt(4)")
    wreads((2,3))
    for u in range(4):
        if u: a("s_waitcnt lgkmcnt(%d)"%(12-4*u))
        a(mfma32(AQK,WQ+4*u,XF+4*u,AQK))
        for j in range(4): a("v_dot2_f32_bf16 v%d, v%d, s%d, v%d"%(sA[j],XF+4*u+j,sONES,sA[j]))
        a(mfma32(AV,XF+4*u,WV+4*u,AV))
        for j in range(4): a("v_dot2_f32_bf16 v%d, v%d, v%d, v%d"%(sB[j],XF+4*u+j,XF+4*u+j,sB[j]))
    a("s_add_u32 s%d, s%d, 1"%(sSIG,sSIG), "s_and_b32 s%d, s%d, 7"%(sSIG,sSIG))
a("s_mov_b32 s%d, 4"%sCNT)
a.label("L_G_LOOP")
stage(0); stage(1)
a("s_sub_u32 s%d, s%d, 1"%(sCNT,sCNT), "s_cmp_lg_u32 s%d, 0"%sCNT, "s_cbranch_scc1 L_G_LOOP")
stamp("gemm done")
CSQ=20; CSV=36; MM=40; RR=112
vHH2=56; vN2=57; vM=58; vRS=59
a("v_mov_b32 v%d, v%d"%(vHH2,vHH), "v_mov_b32 v%d, v%d"%(vN2,vN))
a("v_lshlrev_b32 v6, 4, v%d"%vHH, "v_add_u32 v6, %d, v6"%L_CS, "v_lshlrev_b32 v7, 2, v%d"%vN, "v_add_u32 v7, %d, v7"%(L_CS+128))
for g in range(4): a("ds_read_b128 %s, v6 offset:%d"%(vr(CSQ+4*g,4),32*g))
a("ds_read_b32 v%d, v7"%CSV)
a("v_add_f32 v84, v84, v85", "v_add_f32 v86, v86, v87", "v_add_f32 v88, v88, v89", "v_add_f32 v90, v90, v91",
  "v_add_f32 v84, v84, v86", "v_add_f32 v88, v88, v90", "v_mov_b32 v85, v84", "v_mov_b32 v89, v88",
  "v_permlane32_swap_b32 v84, v85", "v_permlane32_swap_b32 v88, v89",
  "v_add_f32 v84, v84, v85", "v_add_f32 v88, v88, v89",
  "v_mul_f32 v84, 0x3b000000, v84", "v_mul_f32 v88, 0x3b000000, v88",
  "v_fma_f32 v88, -v84, v84, v88", "v_max_f32 v88, 0, v88",
  "v_cvt_pk_bf16_f32 v85, v84, v88", "v_lshlrev_b32 v%d, 16, v85"%vM, "v_and_b32 v88, 0xffff0000, v85",
  "v_add_f32 v88, 0x%x, v88"%f2u(1e-5))
bf16r(88,88); a("v_sqrt_f32 v88, v88"); bf16r(88,88); a("v_rcp_f32 v%d, v88"%vRS)
a("v_cmp_eq_u32 vcc, 1, v%d"%vHH2, "v_cndmask_b32 v6, v%d, v%d, vcc"%(vM,vRS), "s_lshl_b32 s76, s%d, 7"%sW, "s_add_u32 s76, s76, %d"%L_STM,
  "v_lshlrev_b32 v7, 2, v%d"%vN2, "v_lshl_add_u32 v7, v%d, 10, v7"%vHH2, "v_add_u32 v7, s76, v7", "ds_write_b32 v7, v6")
a("v_lshlrev_b32 v8, 4, v%d"%vHH2, "v_add_u32 v8, s76, v8", "s_waitcnt lgkmcnt(0)")
for g in range(4): a("ds_read_b128 %s, v8 offset:%d"%(vr(MM+4*g,4),32*g), "ds_read_b128 %s, v8 offset:%d"%(vr(RR+4*g,4),1024+32*g))
a("v_mul_f32 v60, 0x%x, v%d"%(f2u(0.25*1.4426950408889634),vRS))
for i in range(16):
    a("v_fma_f32 v%d, -v%d, v%d, v%d"%(AQK+i,vM,CSQ+i,AQK+i))
for i in range(16):
    a("v_mul_f32 v%d, v%d, v%d"%(AQK+i,AQK+i,60 if i<8 else vRS))
a("v_mul_f32 v%d, v%d, v%d"%(vQN2,AQK,AQK), "v_mul_f32 v61, v%d, v%d"%(AQK+8,AQK+8))
for i in range(1,8): a("v_fmac_f32 v%d, v%d, v%d"%(vQN2,AQK+i,AQK+i), "v_fmac_f32 v61, v%d, v%d"%(AQK+8+i,AQK+8+i))
KP=20
for i in range(4): a("v_cvt_pk_bf16_f32 v%d, v%d, v%d"%(vQ+i,AQK+2*i,AQK+2*i+1), "v_cvt_pk_bf16_f32 v%d, v%d, v%d"%(KP+i,AQK+8+2*i,AQK+9+2*i))
a("s_lshl_b32 s75, s%d, 3"%sH, "s_add_u32 s75, s75, s%d"%sQB, "s_lshl_b32 s75, s75, 3", "s_add_u32 s75, s75, s%d"%sW, "s_lshl_b32 s75, s75, 11", "s_add_u32 s75, s75, 0x%x"%WS_KV)
a("s_lshl_b32 s76, s%d, 11"%sW, "v_add_u32 v6, s76, v%d"%vL16, "v_add_u32 v7, s76, v%d"%vVA)
a("buffer_store_dwordx4 %s, v%d, %s, s75 offen sc1"%(vr(KP,4),vL16,sr(sWS,4)), "ds_write_b128 v6, %s"%vr(KP,4))
a("v_mov_b32 v62, v%d"%vQN2, "v_mov_b32 v63, v61", "v_permlane32_swap_b32 v%d, v62"%vQN2, "v_permlane32_swap_b32 v61, v63", "v_add_f32 v%d, v%d, v62"%(vQN2,vQN2), "v_add_f32 v61, v61, v63")
for sh in (8,4,2,1): a("v_max_u32_dpp v61, v61, v61 row_ror:%d row_mask:0xf bank_mask:0xf"%sh)
a("v_readlane_b32 s76, v61, 0", "v_readlane_b32 s77, v61, 16", "s_max_u32 s79, s76, s77")
a("s_waitcnt lgkmcnt(1)")
for i in range(16): a("v_fma_f32 v%d, -v%d, v%d, v%d"%(AV+i,MM+i,CSV,AV+i))
for i in range(16): a("v_mul_f32 v%d, v%d, v%d"%(AV+i,AV+i,RR+i))
VP=24
for i in range(8): a("v_cvt_pk_bf16_f32 v%d, v%d, v%d"%(VP+i,AV+2*i,AV+2*i+1))
a("v_max3_f32 v62, |v%d|, |v%d|, |v%d|"%(AV,AV+1,AV+2))
for i in range(3,15,2): a("v_max3_f32 v62, |v%d|, |v%d|, v62"%(AV+i,AV+i+1))
a("v_max_f32 v62, |v%d|, v62"%(AV+15))
a("s_mov_b32 s%d, 0x5d800000"%sU[0])
a("s_mov_b64 exec, %s"%sr(sVMASK,2))
a("v_cmp_nge_f32 vcc, s%d, v62"%sU[0])
a("buffer_store_dwordx4 %s, v%d, %s, s75 offen sc1"%(vr(VP,4),vVA,sr(sWS,4)), "buffer_store_dwordx4 %s, v%d, %s, s75 offen offset:512 sc1"%(vr(VP+4,4),vVA,sr(sWS,4)))
a("ds_write_b128 v7, %s"%vr(VP,4), "ds_write_b128 v7, %s offset:512"%vr(VP+4,4))
a("s_cmp_lg_u64 vcc, 0", "s_cselect_b32 s79, 0x7f800000, s79")
a("s_cmp_lg_u32 s%d, 0"%sH, "s_cbranch_scc1 L_NOR")
a("s_mov_b32 exec_lo, 0x10000", "s_mov_b32 exec_hi, 0x10000")
a("s_lshl_b32 s76, s%d, 3"%sQB, "s_add_u32 s76, s76, s%d"%sW, "s_lshl_b32 s76, s76, 7", "s_add_u32 s76, s76, 0x%x"%WS_R, "v_lshlrev_b32 v8, 4, v%d"%vHH2)
for g in range(4): a("buffer_store_dwordx4 %s, v8, %s, s76 offen offset:%d sc1"%(vr(AV+4*g,4),sr(sWS,4),32*g))
a.label("L_NOR")
a("s_mov_b64 exec, 1")
a("v_mov_b32 v8, s%d"%sNONCE, "v_mov_b32 v9, s79", "v_mov_b32 v62, 0")
a("s_lshl_b32 s76, s%d, 3"%sH, "s_add_u32 s76, s76, s%d"%sW, "s_lshl_b32 s76, s76, 3", "s_add_u32 s76, s76, s%d"%sQB, "s_lshl_b32 s76, s76, 3", "s_add_u32 s76, s76, 0x%x"%WS_FKV)
a("s_waitcnt vmcnt(0)")
a("buffer_store_dwordx2 v[8:9], v62, %s, s76 offen sc1"%sr(sWS,4))
a("s_mov_b64 exec, -1")
stamp("published")
for i in range(16): a("v_mov_b32 v%d, 0"%(O+i), "v_mov_b32 v%d, 0"%(NEGM+i))
for i in range(16): a("v_mov_b32 v%d, s%d"%(VA[0]+i,sONES))
a("s_waitcnt lgkmcnt(0)", "s_barrier")
stamp("B0")
a("s_cmp_lt_u32 s%d, 4"%sW, "s_cbranch_scc1 L_PRIO_A", "s_setprio 1", "s_branch L_PRIO_B")
a.label("L_PRIO_A"); a("s_setprio 2"); a.label("L_PRIO_B")
def run(t0, niter, switch_left, jobs):
    a("s_mov_b32 s%d, %d"%(sCNT,niter), "s_mov_b32 s%d, %d"%(sJOB,0 if jobs else 99))
    a("s_cmp_lt_u32 s%d, 4"%sW, "s_cselect_b32 s%d, %d, 0x7fff"%(sSW,switch_left))
    a("s_mov_b32 s%d, %d"%(sU[0],t0*2048))
    a("s_call_b64 %s, L_RUN"%sr(sRET,2))
run(0,2,0x7fff,False)
stamp("int0 done")
def tile_off(dst, sblk, stile):
    a("s_lshl_b32 s%d, s%d, 3"%(dst,sH), "s_add_u32 s%d, s%d, s%d"%(dst,dst,sblk), "s_lshl_b32 s%d, s%d, 3"%(dst,dst), "s_add_u32 s%d, s%d, s%d"%(dst,dst,stile), "s_lshl_b32 s%d, s%d, 11"%(dst,dst), "s_add_u32 s%d, s%d, 0x%x"%(dst,dst,WS_KV))
a("s_cmp_ge_u32 s%d, 4"%sW, "s_cbranch_scc1 L_LAG0")
a("v_and_b32 v6, 1, v1", "v_add_u32 v6, s%d, v6"%sQB, "v_add_u32 v6, 1, v6", "v_and_b32 v6, 7, v6", "v_lshrrev_b32 v7, 1, v1", "v_lshl_add_u32 v6, v7, 3, v6", "v_lshlrev_b32 v6, 3, v6")
a("s_lshl_b32 s76, s%d, 3"%sH, "s_lshl_b32 s77, s%d, 1"%sW, "s_add_u32 s76, s76, s77", "s_lshl_b32 s76, s76, 6", "s_add_u32 s76, s76, 0x%x"%WS_FKV)
poll(ST,2,6,"s76",4,1)
stamp("poll1")
for i in range(4):
    a("s_add_u32 s73, s%d, %d"%(sQB,1+(i&1)), "s_and_b32 s73, s73, 7", "s_lshl_b32 s77, s%d, 1"%sW, "s_add_u32 s77, s77, %d"%(i>>1))
    tile_off(75,73,77)
    a("buffer_load_dwordx4 %s, v%d, %s, s75 offen sc1"%(vr(ST+8*i,4),vL16,sr(sWS,4)), "buffer_load_dwordx4 %s, v%d, %s, s75 offen offset:1024 sc1"%(vr(ST+8*i+4,4),vL16,sr(sWS,4)))
a.label("L_LAG0")
a("v_lshrrev_b32 v6, 4, v0", "s_lshl_b32 s76, s%d, 7"%sTT, "s_add_u32 s76, s76, %d"%L_STM, "v_lshlrev_b32 v6, 2, v6", "v_add_u32 v6, s76, v6",
  "ds_read_b32 v8, v6", "ds_read_b32 v9, v6 offset:1024")
for i in range(4): unpack(vXF32+2*i, vXF32+2*i+1, vXP+i)
a("s_waitcnt lgkmcnt(0)")
for i in range(8): a("v_sub_f32 v%d, v%d, v8"%(vG+i,vXF32+i))
for i in range(4): a("v_cvt_pk_bf16_f32 v%d, v%d, v%d"%(vXN+i,vG+2*i,vG+2*i+1))
for i in range(4): unpack(vG+2*i,vG+2*i+1,vXN+i)
for i in range(8): a("v_mul_f32 v%d, v%d, v9"%(vG+i,vG+i))
for i in range(4): a("v_cvt_pk_bf16_f32 v%d, v%d, v%d"%(vXN+i,vG+2*i,vG+2*i+1))
for i in range(4): unpack(vG+2*i,vG+2*i+1,vXN+i)
def silu8(tmp):
    for i in range(8): a("v_mul_f32 v%d, 0x%x, v%d"%(tmp+i,f2u(-1.4426950408889634),vG+i))
    for i in range(8): a("v_exp_f32 v%d, v%d"%(tmp+i,tmp+i))
    for i in range(8): a("v_add_f32 v%d, 1.0, v%d"%(tmp+i,tmp+i))
    for i in range(8): a("v_rcp_f32 v%d, v%d"%(tmp+i,tmp+i))
    for i in range(8): a("v_mul_f32 v%d, v%d, v%d"%(vG+i,vG+i,tmp+i))
    for i in range(4): a("v_cvt_pk_bf16_f32 v%d, v%d, v%d"%(tmp+i,vG+2*i,vG+2*i+1))
    for i in range(4): unpack(vG+2*i,vG+2*i+1,tmp+i)
silu8(S[0])
stamp("g done")
a("s_cmp_ge_u32 s%d, 4"%sW, "s_cbranch_scc1 L_LAG1")
a("s_lshl_b32 s76, s%d, 12"%sW, "s_add_u32 s76, s76, 16384", "v_add_u32 v6, s76, v%d"%vL16)
for i in range(4):
    a("s_waitcnt vmcnt(%d)"%(6-2*i))
    off=(i&1)*16384+(i>>1)*2048
    a("ds_write_b128 v6, %s offset:%d"%(vr(ST+8*i,4),off), "ds_write_b128 v6, %s offset:%d"%(vr(ST+8*i+4,4),off+1024))
a.label("L_LAG1")
a("s_waitcnt lgkmcnt(0)", "s_barrier")
stamp("B1")
a("s_lshl_b32 s76, s%d, 3"%sH, "s_add_u32 s76, s76, s%d"%sW, "s_lshl_b32 s76, s76, 6", "s_lshl_b32 s77, s%d, 3"%sW)
a("v_lshlrev_b32 v6, 3, v1", "v_add_u32 v6, s76, v6", "v_and_b32 v7, 7, v1", "v_lshlrev_b32 v7, 6, v7", "v_add_u32 v7, s77, v7", "v_cmp_gt_u32 vcc, 8, v1", "v_cndmask_b32 v6, v7, v6, vcc")
a("s_mov_b32 s76, 0x%x"%WS_FKV)
poll(ST,2,6,"s76",16,2)
a("s_mov_b64 exec, 0xff", "v_mov_b32 v7, %d"%L_KMAX, "ds_max_u32 v7, v%d"%(ST+1), "s_mov_b64 exec, -1")
for i in range(5):
    a("s_add_u32 s73, s%d, %d"%(sQB,3+i), "s_and_b32 s73, s73, 7")
    tile_off(75,73,sW)
    a("buffer_load_dwordx4 %s, v%d, %s, s75 offen sc1"%(vr(ST+4+8*i,4),vL16,sr(sWS,4)), "buffer_load_dwordx4 %s, v%d, %s, s75 offen offset:1024 sc1"%(vr(ST+8+8*i,4),vL16,sr(sWS,4)))
vRK=ST+44; vROW=ST+48
a("s_lshl_b32 s76, s%d, 10"%sW, "s_add_u32 s76, s76, 0x%x"%WS_R, "buffer_load_dwordx4 %s, v%d, %s, s76 offen sc1"%(vr(vRK,4),vL16,sr(sWS,4)))
a("s_lshl_b32 s99, s%d, 5"%sQB, "s_add_u32 s99, s99, s%d"%sH, "s_lshl_b32 s99, s99, 3", "s_add_u32 s99, s99, s%d"%sW, "s_lshl_b32 s76, s99, 10")
a("buffer_load_dwordx4 %s, v%d, %s, s76 offen"%(vr(vROW,4),vL16,sr(sX,4)))
a("s_cmp_lt_u32 s%d, 4"%sW, "s_cbranch_scc0 L_P1", "s_setprio 2"); a.label("L_P1")
run(8,4,1,False)
stamp("int1 done")
a("s_lshl_b32 s76, s%d, 11"%sW, "s_add_u32 s76, s76, %d"%(3*16384), "v_add_u32 v6, s76, v%d"%vL16, "v_add_u32 v7, 0x8000, v6", "s_waitcnt vmcnt(0)")
for i in range(5):
    base,off = (6,i*16384) if i<2 else (7,(i-2)*16384)
    a("ds_write_b128 v%d, %s offset:%d"%(base,vr(ST+4+8*i,4),off), "ds_write_b128 v%d, %s offset:%d"%(base,vr(ST+8+8*i,4),off+1024))
a("s_lshl_b32 s76, s%d, 8"%sW, "s_sub_u32 s76, 0xffff, s76", "v_lshlrev_b32 v8, 2, v1", "v_sub_u32 v8, s76, v8")
for j in range(4):
    r=vRK+j
    a("v_cvt_pk_bf16_f32 v%d, v%d, v%d"%(r,r,r), "v_ashrrev_i32 v9, 31, v%d"%r, "v_or_b32 v9, 0x80000000, v9", "v_xor_b32 v%d, v%d, v9"%(r,r),
      "v_and_b32 v%d, 0xffff0000, v%d"%(r,r), "v_or_b32 v%d, v%d, v8"%(r,r))
    if j<3: a("v_subrev_u32 v8, 1, v8")
a("s_lshl_b32 s76, s%d, 10"%sW, "s_add_u32 s76, s76, %d"%L_KEYS, "v_add_u32 v6, s76, v%d"%vL16, "ds_write_b128 v6, %s"%vr(vRK,4))
a("s_waitcnt lgkmcnt(0)", "s_barrier")
stamp("B2")
a("v_mov_b32 v6, %d"%L_KMAX, "s_lshl_b32 s76, s99, 2", "s_add_u32 s76, s76, %d"%L_KEYS, "v_mov_b32 v7, s76", "v_add_u32 v8, %d, v%d"%(L_KEYS,vL16))
a("ds_read_b32 v6, v6", "ds_read_b32 v7, v7")
for j in range(8): a("ds_read_b128 %s, v8 offset:%d"%(vr(ST+4*j,4),1024*j))
a("s_waitcnt lgkmcnt(8)")
a("v_mul_f32 v6, v6, v%d"%vQN2, "s_mov_b32 s76, 0x%x"%f2u(0.0 if FORCE_FB else 44.0*44.0), "v_cmp_nge_f32 vcc, s76, v6", "v_readfirstlane_b32 s77, v7")
a("s_cmp_lg_u64 vcc, 0", "s_cselect_b32 s%d, 1, 0"%sFB, "s_mov_b32 s78, 0")
for j in range(32):
    if j%4==0: a("s_waitcnt lgkmcnt(%d)"%(7-j//4))
    p=sU[2*(j&1)]
    a("v_cmp_lt_u32 s[%d:%d], s77, v%d"%(p,p+1,ST+j))
    if j>0:
        q=sU[2*((j-1)&1)]; a("s_bcnt1_i32_b64 s79, s[%d:%d]"%(q,q+1), "s_add_u32 s78, s78, s79")
a("s_bcnt1_i32_b64 s79, s[%d:%d]"%(sU[2],sU[3]), "s_add_u32 s78, s78, s79")
a("s_cmp_ge_u32 s78, 8", "s_cbranch_scc1 L_NOSEL")
a("s_and_b32 s76, s99, 255", "s_lshl_b32 s76, s76, 2", "s_add_u32 s76, s76, %d"%L_STM, "v_mov_b32 v6, s76", "ds_read_b32 v8, v6", "ds_read_b32 v9, v6 offset:1024")
for i in range(4): unpack(ST+2*i,ST+2*i+1,vROW+i)
a("s_waitcnt lgkmcnt(0)")
for i in range(8): a("v_sub_f32 v%d, v%d, v8"%(ST+i,ST+i))
for i in range(4): a("v_cvt_pk_bf16_f32 v%d, v%d, v%d"%(vROW+i,ST+2*i,ST+2*i+1))
for i in range(4): unpack(ST+2*i,ST+2*i+1,vROW+i)
for i in range(8): a("v_mul_f32 v%d, v%d, v9"%(ST+i,ST+i))
for i in range(4): a("v_cvt_pk_bf16_f32 v%d, v%d, v%d"%(vROW+i,ST+2*i,ST+2*i+1))
a("s_lshl_b32 s76, s78, 10", "s_add_u32 s76, s76, 0x%x"%WS_XSEL, "buffer_store_dwordx4 %s, v%d, %s, s76 offen sc1"%(vr(vROW,4),vL16,sr(sWS,4)))
a("v_ashrrev_i32 v6, 31, v7", "v_not_b32 v6, v6", "v_or_b32 v6, 0x80000000, v6", "v_xor_b32 v6, v6, v7", "v_and_b32 v6, 0xffff0000, v6",
  "v_mul_f32 v6, 0x%x, v6"%f2u(-1.4426950408889634), "v_exp_f32 v6, v6", "v_add_f32 v6, 1.0, v6", "v_rcp_f32 v6, v6",
  "v_cvt_pk_bf16_f32 v6, v6, v6", "v_and_b32 v6, 0xffff0000, v6", "v_or_b32 v9, s99, v6", "v_mov_b32 v8, s%d"%sNONCE, "v_mov_b32 v6, 0")
a("s_lshl_b32 s76, s78, 3", "s_add_u32 s76, s76, 0x%x"%WS_SEL, "s_mov_b64 exec, 1", "s_waitcnt vmcnt(0)", "buffer_store_dwordx2 v[8:9], v6, %s, s76 offen sc1"%sr(sWS,4), "s_mov_b64 exec, -1")
a.label("L_NOSEL")
stamp("rank done")
a("s_cmp_lt_u32 s%d, 4"%sW, "s_cbranch_scc0 L_P2", "s_setprio 2"); a.label("L_P2")
a("s_cmp_eq_u32 s%d, 0"%sFB, "s_cbranch_scc1 L_FAST")
a("v_mov_b32 v6, 0xff800000", "v_mov_b32 v7, v%d"%vL16, "s_mov_b32 s%d, 64"%sCNT)
a.label("L_MAXP")
a("ds_read_b128 %s, v7"%vr(KF[0],4), "v_add_u32 v7, 2048, v7", "s_waitcnt lgkmcnt(0)", mfma32(S[0],KF[0],vQ,None))
a("v_max3_f32 v6, v%d, v%d, v6"%(S[0],S[0]+1))
for i in range(2,16,2): a("v_max3_f32 v6, v%d, v%d, v6"%(S[0]+i,S[0]+i+1))
a("s_sub_u32 s%d, s%d, 1"%(sCNT,sCNT), "s_cmp_lg_u32 s%d, 0"%sCNT, "s_cbranch_scc1 L_MAXP")
a("v_mov_b32 v7, v6", "v_permlane32_swap_b32 v6, v7", "v_max_f32 v6, v6, v7")
for i in range(16): a("v_sub_f32 v%d, 0, v6"%(NEGM+i), "v_mov_b32 v%d, 0"%(O+i))
run(0,16,3,True)
a("s_branch L_ATT_DONE")
a.label("L_FAST")
run(24,10,2,True)
a.label("L_ATT_DONE")
stamp("att done")
a("s_setprio 3")
a("s_nop 9")
a("v_rcp_f32 v6, v%d"%(O+8))
for i in range(8): a("v_mul_f32 v%d, v%d, v6"%(O+i,O+i))
for i in range(4): a("v_cvt_pk_bf16_f32 v%d, v%d, v%d"%(O+i,O+2*i,O+2*i+1))
a("s_lshl_b32 s75, s%d, 3"%sH, "s_add_u32 s75, s75, s%d"%sQB, "s_lshl_b32 s75, s75, 3", "s_add_u32 s75, s75, s%d"%sW, "s_lshl_b32 s75, s75, 10", "s_add_u32 s75, s75, 0x%x"%WS_O)
a("buffer_store_dwordx4 %s, v%d, %s, s75 offen sc1"%(vr(O,4),vL16,sr(sWS,4)))
a("s_lshl_b32 s76, s%d, 3"%sQB, "s_add_u32 s76, s76, s%d"%sW, "s_lshl_b32 s76, s76, 5", "s_add_u32 s76, s76, s%d"%sH, "s_lshl_b32 s76, s76, 2", "s_add_u32 s76, s76, 0x%x"%WS_FO)
a("v_mov_b32 v8, s%d"%sNONCE, "v_mov_b32 v6, 0", "s_mov_b64 exec, 1", "s_waitcnt vmcnt(0)", "buffer_store_dword v8, v6, %s, s76 offen sc1"%sr(sWS,4), "s_mov_b64 exec, -1")
a("s_setprio 0")
stamp("O pub")
FG=ST; FU=ST+16; FX=ST+32; FD=ST+40
vSL=S[1]; vSH=S[1]+1; BB=S[0]
a("s_cmp_eq_u32 s%d, 0"%sFFN, "s_cbranch_scc1 L_NOFFN1")
a("v_and_b32 v6, 1, v1", "v_cmp_eq_u32 vcc, 1, v6", "v_mov_b32 v7, 0x0c0c0100", "v_mov_b32 v8, 0x01000c0c", "v_cndmask_b32 v%d, v7, v8, vcc"%vSL,
  "v_mov_b32 v7, 0x0c0c0302", "v_mov_b32 v8, 0x03020c0c", "v_cndmask_b32 v%d, v7, v8, vcc"%vSH)
DG=S[1]+4; DU=S[1]+8
for s_ in range(4):
    b=BB+4*s_
    a("v_perm_b32 v%d, v%d, v%d, v%d"%(b,FX+2*s_,FX+2*s_,vSL), "v_perm_b32 v%d, v%d, v%d, v%d"%(b+1,FX+2*s_,FX+2*s_,vSH),
      "v_perm_b32 v%d, v%d, v%d, v%d"%(b+2,FX+2*s_+1,FX+2*s_+1,vSL), "v_perm_b32 v%d, v%d, v%d, v%d"%(b+3,FX+2*s_+1,FX+2*s_+1,vSH))
for s_ in range(4):
    a(mfma16(DG,FG+4*s_,BB+4*s_,None if s_==0 else DG), mfma16(DU,FU+4*s_,BB+4*s_,None if s_==0 else DU))
a("s_lshl_b32 s76, s%d, 11"%sW, "s_add_u32 s76, s76, %d"%L_BOUNCE, "v_add_u32 v6, s76, v%d"%vL16)
a("ds_write_b128 v6, %s"%vr(DG,4), "ds_write_b128 v6, %s offset:1024"%vr(DU,4))
a.label("L_NOFFN1")
a("s_waitcnt lgkmcnt(0)", "s_barrier")
stamp("X")
a("s_cmp_eq_u32 s%d, 0"%sFFN, "s_cbranch_scc1 L_NOFFN2")
a("s_cmp_ge_u32 s%d, 4"%sW, "s_cbranch_scc1 L_FFN_B")
a("v_lshlrev_b32 v6, 2, v0", "v_add_u32 v6, %d, v6"%L_BOUNCE)
for w_ in range(8): a("ds_read_b32 v%d, v6 offset:%d"%(BB+w_,w_*2048), "ds_read_b32 v%d, v6 offset:%d"%(BB+8+w_,w_*2048+1024));
a("v_bfe_u32 v7, v0, 3, 3", "v_lshlrev_b32 v7, 6, v7", "v_bfe_u32 v8, v0, 6, 2", "v_lshl_add_u32 v7, v8, 4, v7", "v_and_b32 v8, 3, v0", "v_lshl_add_u32 v7, v8, 2, v7",
  "v_bfe_u32 v8, v0, 2, 1", "v_lshl_add_u32 v7, v8, 1, v7", "v_add_u32 v7, %d, v7"%L_H)
a("s_waitcnt lgkmcnt(0)")
for w_ in range(1,8): a("v_add_f32 v%d, v%d, v%d"%(BB,BB,BB+w_), "v_add_f32 v%d, v%d, v%d"%(BB+8,BB+8,BB+8+w_))
bf16r(BB,BB); bf16r(BB+8,BB+8)
a("v_mul_f32 v8, 0x%x, v%d"%(f2u(-1.4426950408889634),BB), "v_exp_f32 v8, v8", "v_add_f32 v8, 1.0, v8", "v_rcp_f32 v8, v8", "v_mul_f32 v8, v8, v%d"%BB)
bf16r(8,8)
a("v_mul_f32 v8, v8, v%d"%(BB+8), "v_cvt_pk_bf16_f32 v8, v8, v8", "ds_write_b16 v7, v8")
a.label("L_FFN_B")
a("s_waitcnt lgkmcnt(0)", "s_barrier")
a("v_bfe_u32 v6, v1, 1, 3", "v_lshlrev_b32 v6, 6, v6", "v_lshrrev_b32 v7, 4, v1", "v_lshl_add_u32 v6, v7, 3, v6", "v_add_u32 v6, %d, v6"%L_H)
a("ds_read_b64 %s, v6"%vr(FX,2), "ds_read_b64 %s, v6 offset:32"%vr(FX+2,2))
a("v_bfe_u32 v8, v1, 1, 3", "v_lshlrev_b32 v8, 11, v8", "v_and_b32 v9, 1, v1", "v_lshl_add_u32 v8, v9, 10, v8", "v_lshl_add_u32 v8, v7, 4, v8")
a("s_lshl_b32 s76, s2, 14", "s_lshl_b32 s77, s%d, 7"%sW, "s_add_u32 s76, s76, s77", "s_add_u32 s76, s76, 0x%x"%WS_PART)
a("s_waitcnt lgkmcnt(0)")
for u in range(2):
    b=BB+4*u
    a("v_perm_b32 v%d, v%d, v%d, v%d"%(b,FX+2*u,FX+2*u,vSL), "v_perm_b32 v%d, v%d, v%d, v%d"%(b+1,FX+2*u,FX+2*u,vSH),
      "v_perm_b32 v%d, v%d, v%d, v%d"%(b+2,FX+2*u+1,FX+2*u+1,vSL), "v_perm_b32 v%d, v%d, v%d, v%d"%(b+3,FX+2*u+1,FX+2*u+1,vSH))
for u in range(2):
    a(mfma16(DG,FD+4*u,BB+4*u,None if u==0 else DG), mfma16(DU,FD+8+4*u,BB+4*u,None if u==0 else DU))
a("buffer_store_dwordx4 %s, v8, %s, s76 offen sc1"%(vr(DG,4),sr(sWS,4)), "buffer_store_dwordx4 %s, v8, %s, s76 offen offset:64 sc1"%(vr(DU,4),sr(sWS,4)))
a("s_lshr_b32 s76, s%d, 1"%sW, "s_mul_i32 s76, s76, 448", "s_lshl_b32 s77, s2, 3", "s_add_u32 s76, s76, s77", "s_and_b32 s77, s%d, 1"%sW, "s_lshl_b32 s77, s77, 2", "s_add_u32 s76, s76, s77", "s_add_u32 s76, s76, 0x%x"%WS_FF)
a("v_mov_b32 v8, s%d"%sNONCE, "v_mov_b32 v6, 0", "s_mov_b64 exec, 1", "s_waitcnt vmcnt(0)", "buffer_store_dword v8, v6, %s, s76 offen sc1"%sr(sWS,4), "s_mov_b64 exec, -1")
a.label("L_NOFFN2")
stamp("ffn done")
vSELT=S[1]+12
a("v_lshlrev_b32 v6, 3, v1", "s_mov_b32 s76, 0x%x"%WS_SEL)
poll(vSELT,2,6,"s76",8,3)
a("s_lshl_b32 s76, s%d, 3"%sQB, "s_add_u32 s76, s76, s%d"%sTT)
a("v_bfe_u32 v6, v%d, 5, 6"%(vSELT+1), "s_mov_b64 exec, 0xff", "v_cmp_eq_u32 vcc, s76, v6", "s_mov_b64 exec, -1", "s_mov_b32 s98, vcc_lo")
a("s_lshl_b32 s77, s76, 7", "s_lshl_b32 s78, s%d, 4"%sW, "s_add_u32 s77, s77, s78", "s_add_u32 s77, s77, 0x%x"%WS_FO, "v_lshlrev_b32 v6, 2, v1")
poll(ST,1,6,"s77",4,4)
stamp("poll O")
a("s_lshl_b32 s77, s%d, 18"%sW, "s_lshl_b32 s78, s76, 10", "s_add_u32 s77, s77, s78", "s_add_u32 s77, s77, 0x%x"%WS_O)
for i in range(4):
    a("buffer_load_dwordx4 %s, v%d, %s, s77 offen sc1"%(vr(ST+4*i,4),vL16,sr(sWS,4)))
    if i<3: a("s_add_u32 s77, s77, 0x10000")
a("s_cmp_eq_u32 s98, 0", "s_cbranch_scc1 L_NOY")
a("s_mul_i32 s77, s%d, 448"%sCG, "s_add_u32 s77, s77, 0x%x"%WS_FF, "v_lshlrev_b32 v6, 3, v1")
poll(S[0],2,6,"s77",56,5)
a("v_lshrrev_b32 v6, 5, v0", "v_lshlrev_b32 v6, 14, v6", "v_bfe_u32 v7, v0, 4, 1", "v_lshl_add_u32 v6, v7, 10, v6", "v_and_b32 v8, 15, v0", "v_lshl_add_u32 v6, v8, 4, v6")
a("v_lshlrev_b32 v7, 8, v7", "v_lshl_add_u32 v7, v8, 4, v7", "v_add_u32 v7, %d, v7"%L_Y)
a("s_mov_b32 s97, s98")
a.label("L_YLOOP")
a("s_ff1_i32_b32 s96, s97", "s_bitset0_b32 s97, s96")
a("s_lshl_b32 s77, s96, 11", "s_lshl_b32 s78, s%d, 8"%sCG, "s_add_u32 s77, s77, s78", "s_add_u32 s77, s77, 0x%x"%WS_PART)
for i in range(4): a("v_mov_b32 v%d, 0"%(S[0]+12+i))
for i in range(3):
    a("buffer_load_dwordx4 %s, v6, %s, s77 offen sc1"%(vr(S[0]+4*i,4),sr(sWS,4)), "s_add_u32 s77, s77, 0x40000")
a("s_cmp_ge_u32 s%d, 4"%sW, "s_cbranch_scc1 L_Y3", "buffer_load_dwordx4 %s, v6, %s, s77 offen sc1"%(vr(S[0]+12,4),sr(sWS,4)))
a.label("L_Y3")
a("s_lshl_b32 s78, s96, 9", "v_add_u32 v8, s78, v7", "s_waitcnt vmcnt(0)")
for i in range(4): a("v_add_f32 v%d, v%d, v%d"%(S[0]+i,S[0]+i,S[0]+4+i), "v_add_f32 v%d, v%d, v%d"%(S[0]+8+i,S[0]+8+i,S[0]+12+i))
for i in range(4): a("v_add_f32 v%d, v%d, v%d"%(S[0]+i,S[0]+i,S[0]+8+i))
for i in range(4): a("ds_add_f32 v8, v%d offset:%d"%(S[0]+i,4*i))
a("s_cmp_lg_u32 s97, 0", "s_cbranch_scc1 L_YLOOP")
a.label("L_NOY")
a("s_lshl_b32 s77, s%d, 12"%sW, "v_add_u32 v6, s77, v%d"%vL16)
for i in range(4):
    a("s_waitcnt vmcnt(%d)"%(3-i), "ds_write_b128 v6, %s offset:%d"%(vr(ST+4*i,4),1024*i))
a("s_waitcnt lgkmcnt(0)", "s_barrier")
stamp("Y")
a("s_cmp_lg_u32 s2, 0", "s_cbranch_scc1 L_NON", "s_cmp_lg_u32 s%d, 0"%sW, "s_cbranch_scc1 L_NON")
a("v_mov_b32 v8, s%d"%sNONCE, "v_mov_b32 v6, 0", "s_mov_b64 exec, 1", "buffer_store_dword v8, v6, %s, 0 offen"%sr(sWS,4), "s_mov_b64 exec, -1")
a.label("L_NON")
a("s_lshr_b32 s77, s%d, 2"%sW, "s_lshl_b32 s77, s77, 14", "v_add_u32 v6, s77, v%d"%vL16)
OF=ST
for i in range(8): a("ds_read_b128 %s, v6 offset:%d"%(vr(OF+4*i,4),1024*i))
for i in range(16):
    if i<8: a("s_waitcnt lgkmcnt(7)")
    else: a("s_waitcnt lgkmcnt(%d)"%(15-i))
    a(mfma32(O,WO+4*i,OF+4*(i&7),None if i==0 else O))
    if i<8: a("ds_read_b128 %s, v6 offset:%d"%(vr(OF+4*i,4),1024*(i+8)))
a("s_cmp_eq_u32 s98, 0", "s_cbranch_scc1 L_NOG")
a("v_and_b32 v7, 15, v0", "v_lshlrev_b32 v7, 4, v7", "v_add_u32 v7, %d, v7"%L_Y, "v_lshrrev_b32 v8, 4, v0")
a.label("L_GLOOP")
a("s_ff1_i32_b32 s96, s98", "s_bitset0_b32 s98, s96", "v_readlane_b32 s77, v%d, s96"%(vSELT+1))
a("s_and_b32 s78, s77, 31", "s_and_b32 s77, s77, 0xffff0000", "s_lshl_b32 s79, s96, 9", "v_add_u32 v9, s79, v7")
a("v_cmp_eq_u32 vcc, s78, v8", "s_and_saveexec_b64 s[%d:%d], vcc"%(sU[0],sU[1]), "s_cbranch_execz L_GSKIP")
Y0=S[0]
a("ds_read_b128 %s, v9"%vr(Y0,4), "ds_read_b128 %s, v9 offset:256"%vr(Y0+4,4), "s_waitcnt lgkmcnt(0)")
for i in range(4): a("v_cvt_pk_bf16_f32 v%d, v%d, v%d"%(Y0+8+i,Y0+i,Y0+4+i))
for i in range(4): unpack(Y0+2*i,Y0+2*i+1,Y0+8+i)
for i in range(8): a("v_mul_f32 v%d, s77, v%d"%(Y0+i,Y0+i))
for i in range(4): a("v_cvt_pk_bf16_f32 v%d, v%d, v%d"%(Y0+8+i,Y0+2*i,Y0+2*i+1))
for i in range(4): unpack(Y0+2*i,Y0+2*i+1,Y0+8+i)
for i in range(4): unpack(vG+2*i,vG+2*i+1,vXN+i)
for i in range(8): a("v_add_f32 v%d, v%d, v%d"%(vG+i,vG+i,Y0+i))
for i in range(4): a("v_cvt_pk_bf16_f32 v%d, v%d, v%d"%(Y0+8+i,vG+2*i,vG+2*i+1))
for i in range(4): unpack(vG+2*i,vG+2*i+1,Y0+8+i)
silu8(Y0)
a.label("L_GSKIP")
a("s_mov_b64 exec, -1", "s_cmp_lg_u32 s98, 0", "s_cbranch_scc1 L_GLOOP")
a.label("L_NOG")
a("v_and_b32 v6, 31, v1", "v_mul_u32_u24 v6, %d, v6"%SX_ROW, "v_lshrrev_b32 v7, 5, v1", "v_lshl_add_u32 v6, v7, 4, v6",
  "s_lshr_b32 s77, s%d, 2"%sW, "s_mul_i32 s77, s77, %d"%SX_HALF, "s_and_b32 s78, s%d, 3"%sW, "s_lshl_b32 s78, s78, 7", "s_add_u32 s77, s77, s78", "s_add_u32 s77, s77, %d"%L_SX, "v_add_u32 v6, s77, v6")
a("v_lshrrev_b32 v7, 4, v0", "v_mul_u32_u24 v7, %d, v7"%SX_ROW, "v_and_b32 v8, 15, v0", "v_lshl_add_u32 v7, v8, 5, v7", "v_add_u32 v7, %d, v7"%L_SX)
a("s_nop 7")
for g in range(4): a("ds_write_b128 v6, %s offset:%d"%(vr(O+4*g,4),32*g))
a("s_waitcnt lgkmcnt(0)", "s_barrier")
E=S[0]
a("ds_read_b128 %s, v7"%vr(E,4), "ds_read_b128 %s, v7 offset:16"%vr(E+4,4), "ds_read_b128 %s, v7 offset:%d"%(vr(E+8,4),SX_HALF), "ds_read_b128 %s, v7 offset:%d"%(vr(E+12,4),SX_HALF+16))
a("s_waitcnt lgkmcnt(0)")
for i in range(8): a("v_add_f32 v%d, v%d, v%d"%(E+i,E+i,E+8+i))
for i in range(4): a("v_cvt_pk_bf16_f32 v%d, v%d, v%d"%(E+8+i,E+2*i,E+2*i+1))
for i in range(4): unpack(E+2*i,E+2*i+1,E+8+i)
for i in range(8): a("v_mul_f32 v%d, v%d, v%d"%(E+i,E+i,vG+i))
for i in range(4): a("v_cvt_pk_bf16_f32 v%d, v%d, v%d"%(E+8+i,E+2*i,E+2*i+1))
for i in range(4): unpack(E+2*i,E+2*i+1,E+8+i)
for i in range(8): a("v_add_f32 v%d, v%d, v%d"%(E+i,E+i,vXF32+i))
for i in range(4): a("v_cvt_pk_bf16_f32 v%d, v%d, v%d"%(E+8+i,E+2*i,E+2*i+1))
a("buffer_store_dwordx4 %s, v%d, %s, s%d offen"%(vr(E+8,4),vPC,sr(sOUT,4),sPC))
if PROF:
    stamp("end")
    a("s_lshl_b32 s76, s2, 3", "s_add_u32 s76, s76, s%d"%sW, "s_lshl_b32 s76, s76, 8", "s_add_u32 s76, s76, 0x%x"%WS_DBG, "v_lshlrev_b32 v6, 2, v1",
      "buffer_store_dword v%d, v6, %s, s76 offen"%(vSTAMP,sr(sWS,4)))
a.label("L_END")
a("s_endpgm")

def ex(r): return "v_exp_f32 v%d, v%d"%(r,r)
def cv(d,s_): return "v_cvt_pk_bf16_f32 v%d, v%d, v%d"%(d,s_,s_+1)
vKc=6; vVc=7
def tile(t):
    p=t&1; cur=S[p]; prev=S[1-p]
    e=[ex(cur+i) for i in range(16)]; c=[cv(P+i,cur+2*i) for i in range(8)]
    return ["s_waitcnt lgkmcnt(0)", e[0], e[1], cv(P+7,prev+14), mfma32(prev,KF[1-p],vQ,NEGM),
        "ds_read_b128 %s, v%d offset:%d"%(vr(KF[p],4),vKc,(t+2)*2048), e[2], e[3], mfma32(O,VB[1-p],P+4,O),
        "s_mov_b64 exec, %s"%sr(sVMASK,2),
        "ds_read_b128 %s, v%d offset:%d"%(vr(VA[1-p],4),vVc,(t+1)*2048), "ds_read_b128 %s, v%d offset:%d"%(vr(VB[1-p],4),vVc,(t+1)*2048+512),
        "s_mov_b64 exec, -1",
        c[0],e[4],e[5],c[1],e[6],e[7],c[2],e[8],e[9],c[3],e[10],e[11], mfma32(O,VA[p],P,O), c[4],e[12],e[13],c[5],e[14],e[15],c[6]]
a(".p2align 6")
a.label("L_RUN")
a("v_add_u32 v%d, s%d, v%d"%(vKc,sU[0],vKA), "v_add_u32 v%d, s%d, v%d"%(vVc,sU[0],vVA))
a("ds_read_b128 %s, v%d"%(vr(KF[0],4),vKc), "ds_read_b128 %s, v%d offset:2048"%(vr(KF[1],4),vKc))
a("s_mov_b64 exec, %s"%sr(sVMASK,2), "ds_read_b128 %s, v%d"%(vr(VA[0],4),vVc), "ds_read_b128 %s, v%d offset:512"%(vr(VB[0],4),vVc), "s_mov_b64 exec, -1")
for r in (P+4,P+5,P+6,S[1]+14,S[1]+15): a("v_mov_b32 v%d, 0"%r)
a("s_waitcnt lgkmcnt(3)", mfma32(S[0],KF[0],vQ,NEGM), "s_nop 11")
a(".p2align 6")
a.label("L_RUN_LOOP")
body=[]
for t in range(4): body+=tile(t)
assert not check_seq(body+body), check_seq(body+body)
a(*body)
a("v_add_u32 v%d, 0x2000, v%d"%(vKc,vKc), "v_add_u32 v%d, 0x2000, v%d"%(vVc,vVc))
a("s_cmp_le_u32 s%d, 8"%sJOB, "s_cbranch_scc1 L_JOBS")
a.label("L_JOB_RET")
a("s_sub_u32 s%d, s%d, 1"%(sCNT,sCNT), "s_cmp_lg_u32 s%d, s%d"%(sCNT,sSW), "s_cbranch_scc1 L_NOSW", "s_setprio 0")
a.label("L_NOSW")
a("s_cmp_lg_u32 s%d, 0"%sCNT, "s_cbranch_scc1 L_RUN_LOOP")
a(cv(P+7,S[1]+14), "s_nop 1", mfma32(O,VB[1],P+4,O), "s_waitcnt lgkmcnt(0)", "s_setpc_b64 %s"%sr(sRET,2))
vWOd=8; vWOr=9
a.label("L_JOBS")
a("s_lshl_b32 s93, s%d, 11"%sW, "s_add_u32 s93, s93, %d"%L_BOUNCE)
for j in range(1,9): a("s_cmp_eq_u32 s%d, %d"%(sJOB,j), "s_cbranch_scc1 L_JOB%d"%j)
def wo_dma(j):
    a("s_lshr_b32 s94, s%d, 2"%sW, "s_lshl_b32 s94, s94, 18", "s_lshl_b32 s95, s%d, 8"%sCG, "s_add_u32 s94, s94, s95", "s_and_b32 s95, s%d, 3"%sW, "s_lshl_b32 s95, s95, 6", "s_add_u32 s94, s94, s95",
      "s_add_u32 s94, s94, %d"%(j*32*1024), "s_mov_b32 m0, s93", "s_add_u32 s93, s93, 1024")
    a("buffer_load_dwordx4 v%d, %s, s94 offen lds"%(vWOd,sr(sWO,4)), "s_mov_b32 m0, s93", "s_add_u32 s94, s94, 16384")
    a("buffer_load_dwordx4 v%d, %s, s94 offen lds"%(vWOd,sr(sWO,4)))
def wo_read(j):
    a("s_waitcnt vmcnt(0)")
    for u in range(2):
        r=WO+8*j+4*u
        a("ds_read_b64_tr_b16 %s, v%d offset:%d"%(vr(r,2),vWOr,u*1024), "ds_read_b64_tr_b16 %s, v%d offset:%d"%(vr(r+2,2),vWOr,u*1024+512))
def job_end():
    a("s_add_u32 s%d, s%d, 1"%(sJOB,sJOB), "s_branch L_JOB_RET")
a("v_lshrrev_b32 v8, 2, v1", "v_lshlrev_b32 v8, 10, v8", "v_and_b32 v9, 3, v1", "v_lshl_add_u32 v8, v9, 4, v8")
a("v_lshlrev_b32 v9, 3, v9", "v_bfe_u32 v%d, v1, 4, 1"%ST, "v_lshl_add_u32 v9, v%d, 5, v9"%ST, "v_bfe_u32 v%d, v1, 2, 2"%ST, "v_lshl_add_u32 v9, v%d, 6, v9"%ST,
  "v_lshrrev_b32 v%d, 5, v1"%ST, "v_lshl_add_u32 v9, v%d, 8, v9"%ST, "v_add_u32 v9, s93, v9")
wo_dma(0)
a("s_cmp_eq_u32 s%d, 0"%sFFN, "s_cbranch_scc1 L_J0E")
vFA=ST+55
a("s_movk_i32 s94, %d"%(4*3584), "v_lshrrev_b32 v%d, 4, v1"%vFA, "v_mul_lo_u32 v%d, v%d, s94"%(vFA,vFA), "v_and_b32 v%d, 15, v1"%(FD+14), "v_lshl_add_u32 v%d, v%d, 2, v%d"%(vFA,FD+14,vFA))
a("s_mul_i32 s94, s%d, %d"%(sW,64*3584), "s_lshl_b32 s95, s2, 6", "s_add_u32 s94, s94, s95")
for s_ in range(4):
    for jj in range(4):
        a("buffer_load_dword v%d, v%d, %s, s94 offen"%(FG+4*s_+jj,vFA,sr(sWG,4)), "buffer_load_dword v%d, v%d, %s, s94 offen"%(FU+4*s_+jj,vFA,sr(sWU,4)))
        a("s_add_u32 s94, s94, %d"%(3584 if jj<3 else 13*3584))
a("v_lshrrev_b32 v%d, 4, v1"%vFA, "v_lshlrev_b32 v%d, 12, v%d"%(vFA,vFA), "v_lshl_add_u32 v%d, v%d, 2, v%d"%(vFA,FD+14,vFA))
a("s_lshl_b32 s94, s2, 15", "s_lshl_b32 s95, s%d, 7"%sW, "s_add_u32 s94, s94, s95")
seq=[(jt,u,jj) for u in range(2) for jt in range(2) for jj in range(4)]
for n,(jt,u,jj) in enumerate(seq):
    if n==8: a("s_add_u32 s94, s94, 16384")
    a("buffer_load_dword v%d, v%d, %s, s94 offen offset:%d"%(FD+8*jt+4*u+jj,vFA,sr(sWD,4),jj*1024+jt*64))
a.label("L_J0E")
job_end()
for j in range(1,9):
    a.label("L_JOB%d"%j)
    wo_read(j-1)
    if j<8:
        a("s_waitcnt lgkmcnt(0)")
        wo_dma(j)
    if j==7:
        a("s_cmp_eq_u32 s%d, 0"%sFFN, "s_cbranch_scc1 L_J7E")
        a("v_lshlrev_b32 v%d, 3, v1"%(FX+2), "s_mov_b32 s94, 0x%x"%WS_SEL)
        save=list(vT)
        vT[2],vT[3]=FX+4,FX+5
        poll(FX,2,FX+2,"s94",8,6)
        vT[2],vT[3]=save[2],save[3]
        a("v_bfe_u32 v%d, v1, 1, 3"%(FX+7), "v_lshlrev_b32 v%d, 10, v%d"%(FX+7,FX+7), "v_lshrrev_b32 v%d, 4, v1"%(FX+6), "v_lshl_add_u32 v%d, v%d, 3, v%d"%(FX+7,FX+6,FX+7))
        a("s_lshl_b32 s94, s%d, 7"%sW, "s_add_u32 s94, s94, 0x%x"%WS_XSEL)
        for s_ in range(4): a("buffer_load_dwordx2 %s, v%d, %s, s94 offen offset:%d sc1"%(vr(FX+2*s_,2),FX+7,sr(sWS,4),32*s_))
        a.label("L_J7E")
    job_end()

lines,npad = fix_hazards(a.lines, verbose='--v' in sys.argv)
hdr = open('recurrent_scan__mha_block__moe_arch_mod__prompt.s.ref').read().split('; Override launch')[0]
txt = hdr + "; @launch grid=(256,1,1) block=(512,1,1) lds=%d\n"%LDS_BYTES
txt += '.amdgcn_target "amdgcn-amd-amdhsa--gfx950"\n.text\n.globl %s\n.p2align 8\n.type %s,@function\n'%(KNAME,KNAME)
txt += "\n".join(("" if l.endswith(':') else "    ")+l for l in lines) + "\n"
txt += '''.section .rodata,"a"
.p2align 6
.amdhsa_kernel %s
  .amdhsa_next_free_vgpr 256
  .amdhsa_next_free_sgpr 102
  .amdhsa_accum_offset 256
  .amdhsa_group_segment_fixed_size 0
  .amdhsa_kernarg_size 88
  .amdhsa_user_sgpr_count 2
  .amdhsa_user_sgpr_kernarg_segment_ptr 1
  .amdhsa_system_sgpr_workgroup_id_x 1
  .amdhsa_float_denorm_mode_32 3
.end_amdhsa_kernel
'''%KNAME
open(OUT,'w').write(txt)
print("wrote",OUT,"lines",len(lines),"auto pads",npad)
```

```python
import sys, struct
from asmdsl import Asm, fix_hazards, check_seq, vr, sr

KNAME = "recurrent_scan__mha_block__moe_arch_mod__prompt_kernel"
PROF = '--prof' in sys.argv
FORCE_FB = '--force-fallback' in sys.argv
OUT = [a for a in sys.argv[1:] if not a.startswith('--')][0]

def f2u(x): return struct.unpack('<I', struct.pack('<f', x))[0]

WS_N=0; WS_FKV=0x1000; WS_FO=0x5000; WS_SEL=0x7000; WS_FF=0x7200; WS_XSEL=0x8000; WS_R=0xA000
WS_PART=0x10000; WS_KV=0x100000; WS_O=0x500000; WS_DBG=0x800000; WS_SIZE=0x1000000
L_WQK=16384; L_WV=49152; L_RING=65536; L_RT=131072+128; L_KEYS=131072; L_BOUNCE=139264
L_STM=155648; L_STR=L_STM+1024; L_MISC=157696; L_CS=L_MISC; L_KMAX=L_MISC+256; L_H=L_MISC+512; L_Y=158720
L_OST=0; L_SX=32768; SX_ROW=528; SX_HALF=32*SX_ROW
LDS_BYTES=163840
sX,sWQKV,sWS,sWO,sOUT,sWG,sWU,sWD,sWR,sDBG = 28,32,36,40,44,48,52,56,60,64
sNONCE=26; sH=68; sQB=69; sW=70; sTT=71; sCG=72
sT=[73,74,75,76,77,78,79]
sRET=80; sCNT=82; sSW=83; sJOB=84; sSIG=85; sPOLL=86; sFFN=87; sVMASK=88; sONES=90; sFB=91
sU=[92,93,94,95,96,97,98,99]
sPC=27
vTID=0; vLANE=1; vL16=2; vQN2=3; vKA=4; vVA=5; vT=[6,7,8,9]
vQ=10; vXP=14; vPC=18; vSTAMP=19
KF=[20,24]; VA=[28,36]; VB=[32,40]; vXN=44
S=[48,64]; P=80; vG=88; O=96; NEGM=112; WO=128; ST=192; vXF32=248

a = Asm()
def srd(s, ptr, size):
    a("s_mov_b32 s%d, s%d"%(s,ptr), "s_and_b32 s%d, s%d, 0xffff"%(s+1,ptr+1), "s_mov_b32 s%d, 0x%x"%(s+2,size), "s_mov_b32 s%d, 0x20000"%(s+3))
nstamp=[0]
def stamp(name):
    if not PROF: return
    k=nstamp[0]; nstamp[0]+=1
    a("s_memtime s[100:101] ; STAMP %d %s"%(k,name), "s_waitcnt lgkmcnt(0)", "v_writelane_b32 v%d, s100, %d"%(vSTAMP,k))
def bf16r(dst, src, tmp=None):
    a("v_cvt_pk_bf16_f32 v%d, v%d, v%d"%(dst,src,src), "v_lshlrev_b32 v%d, 16, v%d"%(dst,dst))
def unpack(lo, hi, src):
    a("v_lshlrev_b32 v%d, 16, v%d"%(lo,src), "v_and_b32 v%d, 0xffff0000, v%d"%(hi,src))
def mfma32(d,A,B,C):
    c = "0" if C is None else vr(C,16)
    return "v_mfma_f32_32x32x16_bf16 %s, %s, %s, %s"%(vr(d,16),vr(A,4),vr(B,4),c)
def mfma16(d,A,B,C):
    c = "0" if C is None else vr(C,4)
    return "v_mfma_f32_16x16x32_bf16 %s, %s, %s, %s"%(vr(d,4),vr(A,4),vr(B,4),c)

def poll(vdata, n, vaddr, soff, nlanes, code):
    L=a.uid('POLL'); D=a.uid('POLLD')
    op={1:"buffer_load_dword",2:"buffer_load_dwordx2"}[n]
    mask=(1<<nlanes)-1
    a("s_mov_b32 exec_lo, 0x%x"%(mask&0xffffffff), "s_mov_b32 exec_hi, 0x%x"%(mask>>32), "s_mov_b32 s%d, 0x8000"%sPOLL)
    a.label(L)
    a("%s %s, v%d, %s, %s offen sc1"%(op,vr(vdata,n),vaddr,sr(sWS,4),soff))
    a("s_waitcnt vmcnt(0)")
    a("v_cmp_ne_u32 vcc, s%d, v%d"%(sNONCE,vdata))
    if n==2 and code in (5,):
        a("v_cmp_ne_u32 s[%d:%d], s%d, v%d"%(sU[0],sU[1],sNONCE,vdata+1), "s_or_b64 vcc, vcc, s[%d:%d]"%(sU[0],sU[1]))
    a("s_cbranch_vccz %s"%D)
    a("s_sleep 1", "s_sub_u32 s%d, s%d, 1"%(sPOLL,sPOLL), "s_cmp_lg_u32 s%d, 0"%sPOLL, "s_cbranch_scc1 %s"%L)
    a("v_mov_b32 v%d, %d"%(vT[3],code), "v_mov_b32 v%d, 0"%vT[2], "buffer_store_dword v%d, v%d, %s, 0 offen"%(vT[3],vT[2],sr(sDBG,4)))
    a.label(D)
    a("s_mov_b64 exec, -1")

a.label(KNAME)
a("s_cmp_ge_u32 s2, 0x100", "s_cbranch_scc1 L_END")
a("s_load_dwordx16 s[4:19], s[0:1], 0", "s_load_dwordx4 s[20:23], s[0:1], 64", "s_load_dwordx2 s[24:25], s[0:1], 80")
if PROF:
    a("s_memrealtime s[100:101]", "s_waitcnt lgkmcnt(0)", "v_mov_b32 v%d, 0"%vSTAMP, "v_writelane_b32 v%d, s100, 63"%vSTAMP)
stamp("start")
a("s_and_b32 s73, s2, 7", "s_lshr_b32 s74, s2, 3",
  "s_and_b32 s75, s73, 3", "s_lshl_b32 s75, s75, 1", "s_and_b32 s76, s74, 1", "s_add_u32 s%d, s75, s76"%sQB,
  "s_lshr_b32 s75, s73, 2", "s_lshl_b32 s75, s75, 4", "s_lshr_b32 s76, s74, 1", "s_add_u32 s%d, s75, s76"%sH,
  "s_lshr_b32 s%d, s%d, 2"%(sTT,sH), "s_and_b32 s%d, s%d, 3"%(sCG,sH))
a("v_lshrrev_b32 v6, 6, v0", "v_and_b32 v%d, 63, v0"%vLANE, "v_readfirstlane_b32 s%d, v6"%sW, "v_lshlrev_b32 v%d, 4, v%d"%(vL16,vLANE))
a("s_mov_b32 s%d, 0xffff"%sVMASK, "s_mov_b32 s%d, 0xffff"%(sVMASK+1), "s_mov_b32 s%d, 0x3f803f80"%sONES)
vWRo=112; vWQd=113; vWVd=114; vXD=[115,116]; vXR=[117,118,119,120]; vAQb=121; vAVb=122; vAQ=123; vAV=124; vHH=125; vN=126; vTmp=127
a("v_lshlrev_b32 v%d, 1, v0"%vWRo)
a("v_lshrrev_b32 v6, 4, v0", "v_lshlrev_b32 v6, 10, v6", "v_and_b32 v7, 15, v0", "v_lshl_add_u32 v%d, v7, 4, v6"%vPC)
a("v_lshrrev_b32 v%d, 5, v1"%vHH, "v_and_b32 v%d, 31, v1"%vN)
a("s_movk_i32 s73, 3072")
a("v_lshrrev_b32 v6, 2, v1", "v_mul_lo_u32 v6, v6, s73", "v_bfe_u32 v7, v1, 1, 1", "v_lshl_add_u32 v6, v7, 10, v6", "v_and_b32 v7, 1, v1", "v_lshl_add_u32 v%d, v7, 4, v6"%vWQd)
a("v_lshrrev_b32 v6, 1, v1", "v_mul_lo_u32 v6, v6, s73", "v_lshl_add_u32 v%d, v7, 4, v6"%vWVd)
a("v_lshrrev_b32 v6, 4, v1", "v_and_b32 v7, 7, v1", "v_xor_b32 v6, v6, v7", "v_lshlrev_b32 v6, 4, v6", "v_lshrrev_b32 v7, 3, v1", "v_lshl_add_u32 v%d, v7, 10, v6"%vXD[0], "v_xor_b32 v%d, 64, v%d"%(vXD[1],vXD[0]))
a("s_lshl_b32 s74, s%d, 13"%sW, "s_add_u32 s74, s74, %d"%L_RING)
a("v_bfe_u32 v6, v1, 1, 3", "v_xor_b32 v6, v6, v%d"%vHH, "v_lshlrev_b32 v6, 4, v6", "v_lshl_add_u32 v6, v%d, 7, v6"%vN, "v_add_u32 v%d, s74, v6"%vXR[0])
for u in (1,2,3): a("v_xor_b32 v%d, %d, v%d"%(vXR[u],32*u,vXR[0]))
a("v_bfe_u32 v6, v1, 2, 2", "v_bfe_u32 v7, v1, 4, 1", "v_and_b32 v8, 3, v1")
a("v_lshlrev_b32 v9, 9, v%d"%vHH, "v_lshl_add_u32 v9, v6, 6, v9", "v_lshl_add_u32 v9, v7, 5, v9", "v_lshl_add_u32 v9, v8, 3, v9", "v_add_u32 v%d, %d, v9"%(vAQb,L_WQK))
a("v_lshlrev_b32 v9, 8, v%d"%vHH, "v_lshl_add_u32 v9, v6, 5, v9")
a("v_lshl_add_u32 v8, v8, 3, v9", "v_add_u32 v8, %d, v8"%L_WV, "v_add_u32 v9, %d, v9"%L_RT, "v_cmp_eq_u32 vcc, 1, v7", "v_cndmask_b32 v%d, v8, v9, vcc"%vAVb)
a("v_mov_b32 v%d, v%d"%(vKA,vL16))
a("v_and_b32 v6, 15, v1", "v_lshlrev_b32 v6, 4, v6", "v_lshl_add_u32 v6, v%d, 8, v6"%vHH, "v_add_u32 v%d, 1024, v6"%vVA)
a("v_mov_b32 v20, 0","v_mov_b32 v21, 0","v_mov_b32 v22, 0","v_mov_b32 v23, 0", "v_lshlrev_b32 v6, 4, v0", "v_add_u32 v6, %d, v6"%L_MISC)
a("s_cmp_ge_u32 s%d, 5"%sW, "s_cbranch_scc1 L_NOZERO", "ds_write_b128 v6, v[20:23]")
a.label("L_NOZERO")
a("s_waitcnt lgkmcnt(0)")
a("s_load_dword s%d, s[24:25], 0"%sNONCE)
srd(sWR,12,1024); srd(sX,4,2048*1024); srd(sWQKV,6,512*3072)
a("s_lshl_b32 s75, s%d, 3"%sQB, "s_add_u32 s75, s75, s%d"%sTT, "s_lshl_b32 s75, s75, 15", "s_lshl_b32 s76, s%d, 8"%sCG, "s_add_u32 s%d, s75, s76"%sPC)
a("buffer_load_ushort v6, v%d, %s, 0 offen"%(vWRo,sr(sWR,4)))
a("buffer_load_dwordx4 %s, v%d, %s, s%d offen"%(vr(vXP,4),vPC,sr(sX,4),sPC))
a("s_lshl_b32 s75, s%d, 5"%sH)
a("s_mul_i32 s76, s%d, %d"%(sW,4*16*3072), "s_add_u32 s76, s76, s75", "s_lshl_b32 s77, s%d, 12"%sW, "s_add_u32 s77, s77, %d"%L_WQK)
for b in range(4):
    a("s_mov_b32 m0, s77", "s_add_u32 s77, s77, 1024", "buffer_load_dwordx4 v%d, %s, s76 offen lds"%(vWQd,sr(sWQKV,4)), "s_add_u32 s76, s76, %d"%(16*3072))
a("s_mul_i32 s76, s%d, %d"%(sW,2*32*3072), "s_add_u32 s76, s76, s75", "s_add_u32 s76, s76, 2048", "s_lshl_b32 s77, s%d, 11"%sW, "s_add_u32 s77, s77, %d"%L_WV)
for b in range(2):
    a("s_mov_b32 m0, s77", "s_add_u32 s77, s77, 1024", "buffer_load_dwordx4 v%d, %s, s76 offen lds"%(vWVd,sr(sWQKV,4)), "s_add_u32 s76, s76, %d"%(32*3072))
a("s_lshl_b32 s78, s%d, 3"%sQB, "s_add_u32 s78, s78, s%d"%sW, "s_lshl_b32 s78, s78, 15")
a("s_and_b32 s%d, s%d, 7"%(sSIG,sH))
def xdma(sig_reg, slot):
    a("s_lshl_b32 s76, s%d, 7"%sig_reg, "s_add_u32 s76, s76, s78", "s_add_u32 s77, s74, %d"%(slot*4096))
    for g in range(4):
        a("s_mov_b32 m0, s77")
        a("s_add_u32 s77, s77, 1024")
        a("buffer_load_dwordx4 v%d, %s, s76 offen lds"%(vXD[g&1],sr(sX,4)))
        if g<3: a("s_add_u32 s76, s76, 8192")
xdma(sSIG,0)
a("s_add_u32 s79, s%d, 1"%sSIG, "s_and_b32 s79, s79, 7")
xdma(79,1)
srd(sWS,24,WS_SIZE); srd(sWO,8,512*1024); srd(sOUT,20,2048*1024); srd(sWG,14,512*3584); srd(sWU,16,512*3584); srd(sWD,18,1792*1024); srd(sDBG,22,256)
a("s_cmp_lt_u32 s2, 56", "s_cselect_b32 s%d, 1, 0"%sFFN)
XF=20; WQ=36; WV=52; AQK=68; AV=96; sA=[84,85,86,87]; sB=[88,89,90,91]
for i in range(16): a("v_mov_b32 v%d, 0"%(AQK+i), "v_mov_b32 v%d, 0"%(AV+i))
for r in sA+sB: a("v_mov_b32 v%d, 0"%r)
a("s_waitcnt vmcnt(15) lgkmcnt(0)")
a("s_mul_i32 s%d, s%d, 0x9E3779B1"%(sNONCE,sNONCE), "s_add_u32 s%d, s%d, 0x7F4A7C15"%(sNONCE,sNONCE))
a("v_or_b32 v6, 0x3f800000, v6", "v_mov_b32 v7, 0", "v_lshlrev_b32 v8, 5, v0", "v_add_u32 v8, %d, v8"%L_RT, "ds_write_b64 v8, v[6:7]")
a("s_waitcnt vmcnt(8) lgkmcnt(0)", "s_barrier")
stamp("W landed")
def wreads(us):
    for u in us:
        a("ds_read_b64_tr_b16 %s, v%d offset:%d"%(vr(WQ+4*u,2),vAQ,u*1024), "ds_read_b64_tr_b16 %s, v%d offset:%d"%(vr(WQ+4*u+2,2),vAQ,u*1024+256))
        a("ds_read_b64_tr_b16 %s, v%d offset:%d"%(vr(WV+4*u,2),vAV,u*512), "ds_read_b64_tr_b16 %s, v%d offset:%d"%(vr(WV+4*u+2,2),vAV,u*512+128))
def waddr(sreg):
    a("s_lshl_b32 s76, s%d, 12"%sreg, "s_lshl_b32 s77, s%d, 11"%sreg, "v_add_u32 v%d, s76, v%d"%(vAQ,vAQb), "v_add_u32 v%d, s77, v%d"%(vAV,vAVb))
waddr(sW)
wreads((0,1,2)); a("s_waitcnt lgkmcnt(4)"); wreads((3,))
a("v_mov_b32 v6, 0","v_mov_b32 v7, 0","v_mov_b32 v8, 0","v_mov_b32 v9, 0")
a("s_waitcnt lgkmcnt(0)")
for j in range(16):
    a("v_dot2_f32_bf16 v%d, v%d, s%d, v%d"%(6+(j&1),WQ+j,sONES,6+(j&1)), "v_dot2_f32_bf16 v%d, v%d, s%d, v%d"%(8+(j&1),WV+j,sONES,8+(j&1)))
a("v_add_f32 v6, v6, v7", "v_add_f32 v8, v8, v9", "v_lshlrev_b32 v7, 2, v%d"%vN, "v_add_u32 v7, %d, v7"%L_CS)
a("ds_add_f32 v7, v6", "ds_add_f32 v7, v8 offset:128", "s_waitcnt lgkmcnt(0)", "s_barrier")
stamp("colsum")
def stage(slot, last_wait_label=False):
    waddr(sSIG)
    if slot==0:
        a("s_waitcnt vmcnt(4)")
    else:
        a("s_cmp_eq_u32 s%d, 1"%sCNT, "s_cbranch_scc1 L_G_W0", "s_waitcnt vmcnt(4)", "s_branch L_G_W1")
        a.label("L_G_W0"); a("s_waitcnt vmcnt(0)"); a.label("L_G_W1")
    for u in range(4): a("ds_read_b128 %s, v%d offset:%d"%(vr(XF+4*u,4),vXR[u],slot*4096))
    wreads((0,1))
    a("s_waitcnt lgkmcnt(8)")
    L=a.uid("L_G_ND")
    a("s_cmp_eq_u32 s%d, 1"%sCNT, "s_cbranch_scc1 %s"%L)
    a("s_add_u32 s79, s%d, 2"%sSIG, "s_and_b32 s79, s79, 7")
    xdma(79,slot)
    a.label(L)
    a("s_waitcnt lgkmcnt(4)")
    wreads((2,3))
    for u in range(4):
        if u: a("s_waitcnt lgkmcnt(%d)"%(12-4*u))
        a(mfma32(AQK,WQ+4*u,XF+4*u,AQK))
        for j in range(4): a("v_dot2_f32_bf16 v%d, v%d, s%d, v%d"%(sA[j],XF+4*u+j,sONES,sA[j]))
        a(mfma32(AV,XF+4*u,WV+4*u,AV))
        for j in range(4): a("v_dot2_f32_bf16 v%d, v%d, v%d, v%d"%(sB[j],XF+4*u+j,XF+4*u+j,sB[j]))
    a("s_add_u32 s%d, s%d, 1"%(sSIG,sSIG), "s_and_b32 s%d, s%d, 7"%(sSIG,sSIG))
a("s_mov_b32 s%d, 4"%sCNT)
a.label("L_G_LOOP")
stage(0); stage(1)
a("s_sub_u32 s%d, s%d, 1"%(sCNT,sCNT), "s_cmp_lg_u32 s%d, 0"%sCNT, "s_cbranch_scc1 L_G_LOOP")
stamp("gemm done")
CSQ=20; CSV=36; MM=40; RR=112
vHH2=56; vN2=57; vM=58; vRS=59
a("v_mov_b32 v%d, v%d"%(vHH2,vHH), "v_mov_b32 v%d, v%d"%(vN2,vN))
a("v_lshlrev_b32 v6, 4, v%d"%vHH, "v_add_u32 v6, %d, v6"%L_CS, "v_lshlrev_b32 v7, 2, v%d"%vN, "v_add_u32 v7, %d, v7"%(L_CS+128))
for g in range(4): a("ds_read_b128 %s, v6 offset:%d"%(vr(CSQ+4*g,4),32*g))
a("ds_read_b32 v%d, v7"%CSV)
a("v_add_f32 v84, v84, v85", "v_add_f32 v86, v86, v87", "v_add_f32 v88, v88, v89", "v_add_f32 v90, v90, v91",
  "v_add_f32 v84, v84, v86", "v_add_f32 v88, v88, v90", "v_mov_b32 v85, v84", "v_mov_b32 v89, v88",
  "v_permlane32_swap_b32 v84, v85", "v_permlane32_swap_b32 v88, v89",
  "v_add_f32 v84, v84, v85", "v_add_f32 v88, v88, v89",
  "v_mul_f32 v84, 0x3b000000, v84", "v_mul_f32 v88, 0x3b000000, v88",
  "v_fma_f32 v88, -v84, v84, v88", "v_max_f32 v88, 0, v88",
  "v_cvt_pk_bf16_f32 v85, v84, v88", "v_lshlrev_b32 v%d, 16, v85"%vM, "v_and_b32 v88, 0xffff0000, v85",
  "v_add_f32 v88, 0x%x, v88"%f2u(1e-5))
bf16r(88,88); a("v_sqrt_f32 v88, v88"); bf16r(88,88); a("v_rcp_f32 v%d, v88"%vRS)
a("v_cmp_eq_u32 vcc, 1, v%d"%vHH2, "v_cndmask_b32 v6, v%d, v%d, vcc"%(vM,vRS), "s_lshl_b32 s76, s%d, 7"%sW, "s_add_u32 s76, s76, %d"%L_STM,
  "v_lshlrev_b32 v7, 2, v%d"%vN2, "v_lshl_add_u32 v7, v%d, 10, v7"%vHH2, "v_add_u32 v7, s76, v7", "ds_write_b32 v7, v6")
a("v_lshlrev_b32 v8, 4, v%d"%vHH2, "v_add_u32 v8, s76, v8", "s_waitcnt lgkmcnt(0)")
for g in range(4): a("ds_read_b128 %s, v8 offset:%d"%(vr(MM+4*g,4),32*g), "ds_read_b128 %s, v8 offset:%d"%(vr(RR+4*g,4),1024+32*g))
a("v_mul_f32 v60, 0x%x, v%d"%(f2u(0.25*1.4426950408889634),vRS))
for i in range(16):
    a("v_fma_f32 v%d, -v%d, v%d, v%d"%(AQK+i,vM,CSQ+i,AQK+i))
for i in range(16):
    a("v_mul_f32 v%d, v%d, v%d"%(AQK+i,AQK+i,60 if i<8 else vRS))
a("v_mul_f32 v%d, v%d, v%d"%(vQN2,AQK,AQK), "v_mul_f32 v61, v%d, v%d"%(AQK+8,AQK+8))
for i in range(1,8): a("v_fmac_f32 v%d, v%d, v%d"%(vQN2,AQK+i,AQK+i), "v_fmac_f32 v61, v%d, v%d"%(AQK+8+i,AQK+8+i))
KP=20
for i in range(4): a("v_cvt_pk_bf16_f32 v%d, v%d, v%d"%(vQ+i,AQK+2*i,AQK+2*i+1), "v_cvt_pk_bf16_f32 v%d, v%d, v%d"%(KP+i,AQK+8+2*i,AQK+9+2*i))
a("s_lshl_b32 s75, s%d, 3"%sH, "s_add_u32 s75, s75, s%d"%sQB, "s_lshl_b32 s75, s75, 3", "s_add_u32 s75, s75, s%d"%sW, "s_lshl_b32 s75, s75, 11", "s_add_u32 s75, s75, 0x%x"%WS_KV)
a("s_lshl_b32 s76, s%d, 11"%sW, "v_add_u32 v6, s76, v%d"%vL16, "v_add_u32 v7, s76, v%d"%vVA)
a("buffer_store_dwordx4 %s, v%d, %s, s75 offen sc1"%(vr(KP,4),vL16,sr(sWS,4)), "ds_write_b128 v6, %s"%vr(KP,4))
a("v_mov_b32 v62, v%d"%vQN2, "v_mov_b32 v63, v61", "v_permlane32_swap_b32 v%d, v62"%vQN2, "v_permlane32_swap_b32 v61, v63", "v_add_f32 v%d, v%d, v62"%(vQN2,vQN2), "v_add_f32 v61, v61, v63")
for sh in (8,4,2,1): a("v_max_u32_dpp v61, v61, v61 row_ror:%d row_mask:0xf bank_mask:0xf"%sh)
a("v_readlane_b32 s76, v61, 0", "v_readlane_b32 s77, v61, 16", "s_max_u32 s79, s76, s77")
a("s_waitcnt lgkmcnt(1)")
for i in range(16): a("v_fma_f32 v%d, -v%d, v%d, v%d"%(AV+i,MM+i,CSV,AV+i))
for i in range(16): a("v_mul_f32 v%d, v%d, v%d"%(AV+i,AV+i,RR+i))
VP=24
for i in range(8): a("v_cvt_pk_bf16_f32 v%d, v%d, v%d"%(VP+i,AV+2*i,AV+2*i+1))
a("v_max3_f32 v62, |v%d|, |v%d|, |v%d|"%(AV,AV+1,AV+2))
for i in range(3,15,2): a("v_max3_f32 v62, |v%d|, |v%d|, v62"%(AV+i,AV+i+1))
a("v_max_f32 v62, |v%d|, v62"%(AV+15))
a("s_mov_b32 s%d, 0x5d800000"%sU[0])
a("s_mov_b64 exec, %s"%sr(sVMASK,2))
a("v_cmp_nge_f32 vcc, s%d, v62"%sU[0])
a("buffer_store_dwordx4 %s, v%d, %s, s75 offen sc1"%(vr(VP,4),vVA,sr(sWS,4)), "buffer_store_dwordx4 %s, v%d, %s, s75 offen offset:512 sc1"%(vr(VP+4,4),vVA,sr(sWS,4)))
a("ds_write_b128 v7, %s"%vr(VP,4), "ds_write_b128 v7, %s offset:512"%vr(VP+4,4))
a("s_cmp_lg_u64 vcc, 0", "s_cselect_b32 s79, 0x7f800000, s79")
a("s_cmp_lg_u32 s%d, 0"%sH, "s_cbranch_scc1 L_NOR")
a("s_mov_b32 exec_lo, 0x10000", "s_mov_b32 exec_hi, 0x10000")
a("s_lshl_b32 s76, s%d, 3"%sQB, "s_add_u32 s76, s76, s%d"%sW, "s_lshl_b32 s76, s76, 7", "s_add_u32 s76, s76, 0x%x"%WS_R, "v_lshlrev_b32 v8, 4, v%d"%vHH2)
for g in range(4): a("buffer_store_dwordx4 %s, v8, %s, s76 offen offset:%d sc1"%(vr(AV+4*g,4),sr(sWS,4),32*g))
a.label("L_NOR")
a("s_mov_b64 exec, 1")
a("v_mov_b32 v8, s%d"%sNONCE, "v_mov_b32 v9, s79", "v_mov_b32 v62, 0")
a("s_lshl_b32 s76, s%d, 3"%sH, "s_add_u32 s76, s76, s%d"%sW, "s_lshl_b32 s76, s76, 3", "s_add_u32 s76, s76, s%d"%sQB, "s_lshl_b32 s76, s76, 3", "s_add_u32 s76, s76, 0x%x"%WS_FKV)
a("s_waitcnt vmcnt(0)")
a("buffer_store_dwordx2 v[8:9], v62, %s, s76 offen sc1"%sr(sWS,4))
a("s_mov_b64 exec, -1")
stamp("published")
for i in range(16): a("v_mov_b32 v%d, 0"%(O+i), "v_mov_b32 v%d, 0"%(NEGM+i))
for i in range(16): a("v_mov_b32 v%d, s%d"%(VA[0]+i,sONES))
a("s_waitcnt lgkmcnt(0)", "s_barrier")
stamp("B0")
a("s_cmp_lt_u32 s%d, 4"%sW, "s_cbranch_scc1 L_PRIO_A", "s_setprio 1", "s_branch L_PRIO_B")
a.label("L_PRIO_A"); a("s_setprio 2"); a.label("L_PRIO_B")
def run(t0, niter, switch_left, jobs):
    a("s_mov_b32 s%d, %d"%(sCNT,niter), "s_mov_b32 s%d, %d"%(sJOB,0 if jobs else 99))
    a("s_cmp_lt_u32 s%d, 4"%sW, "s_cselect_b32 s%d, %d, 0x7fff"%(sSW,switch_left))
    a("s_mov_b32 s%d, %d"%(sU[0],t0*2048))
    a("s_call_b64 %s, L_RUN"%sr(sRET,2))
run(0,2,0x7fff,False)
stamp("int0 done")
def tile_off(dst, sblk, stile):
    a("s_lshl_b32 s%d, s%d, 3"%(dst,sH), "s_add_u32 s%d, s%d, s%d"%(dst,dst,sblk), "s_lshl_b32 s%d, s%d, 3"%(dst,dst), "s_add_u32 s%d, s%d, s%d"%(dst,dst,stile), "s_lshl_b32 s%d, s%d, 11"%(dst,dst), "s_add_u32 s%d, s%d, 0x%x"%(dst,dst,WS_KV))
a("s_cmp_ge_u32 s%d, 4"%sW, "s_cbranch_scc1 L_LAG0")
a("v_and_b32 v6, 1, v1", "v_add_u32 v6, s%d, v6"%sQB, "v_add_u32 v6, 1, v6", "v_and_b32 v6, 7, v6", "v_lshrrev_b32 v7, 1, v1", "v_lshl_add_u32 v6, v7, 3, v6", "v_lshlrev_b32 v6, 3, v6")
a("s_lshl_b32 s76, s%d, 3"%sH, "s_lshl_b32 s77, s%d, 1"%sW, "s_add_u32 s76, s76, s77", "s_lshl_b32 s76, s76, 6", "s_add_u32 s76, s76, 0x%x"%WS_FKV)
poll(ST,2,6,"s76",4,1)
stamp("poll1")
for i in range(4):
    a("s_add_u32 s73, s%d, %d"%(sQB,1+(i&1)), "s_and_b32 s73, s73, 7", "s_lshl_b32 s77, s%d, 1"%sW, "s_add_u32 s77, s77, %d"%(i>>1))
    tile_off(75,73,77)
    a("buffer_load_dwordx4 %s, v%d, %s, s75 offen sc1"%(vr(ST+8*i,4),vL16,sr(sWS,4)), "buffer_load_dwordx4 %s, v%d, %s, s75 offen offset:1024 sc1"%(vr(ST+8*i+4,4),vL16,sr(sWS,4)))
a.label("L_LAG0")
a("v_lshrrev_b32 v6, 4, v0", "s_lshl_b32 s76, s%d, 7"%sTT, "s_add_u32 s76, s76, %d"%L_STM, "v_lshlrev_b32 v6, 2, v6", "v_add_u32 v6, s76, v6",
  "ds_read_b32 v8, v6", "ds_read_b32 v9, v6 offset:1024")
for i in range(4): unpack(vXF32+2*i, vXF32+2*i+1, vXP+i)
a("s_waitcnt lgkmcnt(0)")
for i in range(8): a("v_sub_f32 v%d, v%d, v8"%(vG+i,vXF32+i))
for i in range(4): a("v_cvt_pk_bf16_f32 v%d, v%d, v%d"%(vXN+i,vG+2*i,vG+2*i+1))
for i in range(4): unpack(vG+2*i,vG+2*i+1,vXN+i)
for i in range(8): a("v_mul_f32 v%d, v%d, v9"%(vG+i,vG+i))
for i in range(4): a("v_cvt_pk_bf16_f32 v%d, v%d, v%d"%(vXN+i,vG+2*i,vG+2*i+1))
for i in range(4): unpack(vG+2*i,vG+2*i+1,vXN+i)
def silu8(tmp):
    for i in range(8): a("v_mul_f32 v%d, 0x%x, v%d"%(tmp+i,f2u(-1.4426950408889634),vG+i))
    for i in range(8): a("v_exp_f32 v%d, v%d"%(tmp+i,tmp+i))
    for i in range(8): a("v_add_f32 v%d, 1.0, v%d"%(tmp+i,tmp+i))
    for i in range(8): a("v_rcp_f32 v%d, v%d"%(tmp+i,tmp+i))
    for i in range(8): a("v_mul_f32 v%d, v%d, v%d"%(vG+i,vG+i,tmp+i))
    for i in range(4): a("v_cvt_pk_bf16_f32 v%d, v%d, v%d"%(tmp+i,vG+2*i,vG+2*i+1))
    for i in range(4): unpack(vG+2*i,vG+2*i+1,tmp+i)
silu8(S[0])
stamp("g done")
a("s_cmp_ge_u32 s%d, 4"%sW, "s_cbranch_scc1 L_LAG1")
a("s_lshl_b32 s76, s%d, 12"%sW, "s_add_u32 s76, s76, 16384", "v_add_u32 v6, s76, v%d"%vL16)
for i in range(4):
    a("s_waitcnt vmcnt(%d)"%(6-2*i))
    off=(i&1)*16384+(i>>1)*2048
    a("ds_write_b128 v6, %s offset:%d"%(vr(ST+8*i,4),off), "ds_write_b128 v6, %s offset:%d"%(vr(ST+8*i+4,4),off+1024))
a.label("L_LAG1")
a("s_waitcnt lgkmcnt(0)", "s_barrier")
stamp("B1")
a("s_lshl_b32 s76, s%d, 3"%sH, "s_add_u32 s76, s76, s%d"%sW, "s_lshl_b32 s76, s76, 6", "s_lshl_b32 s77, s%d, 3"%sW)
a("v_lshlrev_b32 v6, 3, v1", "v_add_u32 v6, s76, v6", "v_and_b32 v7, 7, v1", "v_lshlrev_b32 v7, 6, v7", "v_add_u32 v7, s77, v7", "v_cmp_gt_u32 vcc, 8, v1", "v_cndmask_b32 v6, v7, v6, vcc")
a("s_mov_b32 s76, 0x%x"%WS_FKV)
poll(ST,2,6,"s76",16,2)
a("s_mov_b64 exec, 0xff", "v_mov_b32 v7, %d"%L_KMAX, "ds_max_u32 v7, v%d"%(ST+1), "s_mov_b64 exec, -1")
for i in range(5):
    a("s_add_u32 s73, s%d, %d"%(sQB,3+i), "s_and_b32 s73, s73, 7")
    tile_off(75,73,sW)
    a("buffer_load_dwordx4 %s, v%d, %s, s75 offen sc1"%(vr(ST+4+8*i,4),vL16,sr(sWS,4)), "buffer_load_dwordx4 %s, v%d, %s, s75 offen offset:1024 sc1"%(vr(ST+8+8*i,4),vL16,sr(sWS,4)))
vRK=ST+44; vROW=ST+48
a("s_lshl_b32 s76, s%d, 10"%sW, "s_add_u32 s76, s76, 0x%x"%WS_R, "buffer_load_dwordx4 %s, v%d, %s, s76 offen sc1"%(vr(vRK,4),vL16,sr(sWS,4)))
a("s_lshl_b32 s99, s%d, 5"%sQB, "s_add_u32 s99, s99, s%d"%sH, "s_lshl_b32 s99, s99, 3", "s_add_u32 s99, s99, s%d"%sW, "s_lshl_b32 s76, s99, 10")
a("buffer_load_dwordx4 %s, v%d, %s, s76 offen"%(vr(vROW,4),vL16,sr(sX,4)))
a("s_cmp_lt_u32 s%d, 4"%sW, "s_cbranch_scc0 L_P1", "s_setprio 2"); a.label("L_P1")
run(8,4,1,False)
stamp("int1 done")
a("s_lshl_b32 s76, s%d, 11"%sW, "s_add_u32 s76, s76, %d"%(3*16384), "v_add_u32 v6, s76, v%d"%vL16, "v_add_u32 v7, 0x8000, v6", "s_waitcnt vmcnt(0)")
for i in range(5):
    base,off = (6,i*16384) if i<2 else (7,(i-2)*16384)
    a("ds_write_b128 v%d, %s offset:%d"%(base,vr(ST+4+8*i,4),off), "ds_write_b128 v%d, %s offset:%d"%(base,vr(ST+8+8*i,4),off+1024))
a("s_lshl_b32 s76, s%d, 8"%sW, "s_sub_u32 s76, 0xffff, s76", "v_lshlrev_b32 v8, 2, v1", "v_sub_u32 v8, s76, v8")
for j in range(4):
    r=vRK+j
    a("v_cvt_pk_bf16_f32 v%d, v%d, v%d"%(r,r,r), "v_ashrrev_i32 v9, 31, v%d"%r, "v_or_b32 v9, 0x80000000, v9", "v_xor_b32 v%d, v%d, v9"%(r,r),
      "v_and_b32 v%d, 0xffff0000, v%d"%(r,r), "v_or_b32 v%d, v%d, v8"%(r,r))
    if j<3: a("v_subrev_u32 v8, 1, v8")
a("s_lshl_b32 s76, s%d, 10"%sW, "s_add_u32 s76, s76, %d"%L_KEYS, "v_add_u32 v6, s76, v%d"%vL16, "ds_write_b128 v6, %s"%vr(vRK,4))
a("s_waitcnt lgkmcnt(0)", "s_barrier")
stamp("B2")
a("v_mov_b32 v6, %d"%L_KMAX, "s_lshl_b32 s76, s99, 2", "s_add_u32 s76, s76, %d"%L_KEYS, "v_mov_b32 v7, s76", "v_add_u32 v8, %d, v%d"%(L_KEYS,vL16))
a("ds_read_b32 v6, v6", "ds_read_b32 v7, v7")
for j in range(8): a("ds_read_b128 %s, v8 offset:%d"%(vr(ST+4*j,4),1024*j))
a("s_waitcnt lgkmcnt(8)")
a("v_mul_f32 v6, v6, v%d"%vQN2, "s_mov_b32 s76, 0x%x"%f2u(0.0 if FORCE_FB else 44.0*44.0), "v_cmp_nge_f32 vcc, s76, v6", "v_readfirstlane_b32 s77, v7")
a("s_cmp_lg_u64 vcc, 0", "s_cselect_b32 s%d, 1, 0"%sFB, "s_mov_b32 s78, 0")
for j in range(32):
    if j%4==0: a("s_waitcnt lgkmcnt(%d)"%(7-j//4))
    p=sU[2*(j&1)]
    a("v_cmp_lt_u32 s[%d:%d], s77, v%d"%(p,p+1,ST+j))
    if j>0:
        q=sU[2*((j-1)&1)]; a("s_bcnt1_i32_b64 s79, s[%d:%d]"%(q,q+1), "s_add_u32 s78, s78, s79")
a("s_bcnt1_i32_b64 s79, s[%d:%d]"%(sU[2],sU[3]), "s_add_u32 s78, s78, s79")
a("s_cmp_ge_u32 s78, 8", "s_cbranch_scc1 L_NOSEL")
a("s_and_b32 s76, s99, 255", "s_lshl_b32 s76, s76, 2", "s_add_u32 s76, s76, %d"%L_STM, "v_mov_b32 v6, s76", "ds_read_b32 v8, v6", "ds_read_b32 v9, v6 offset:1024")
for i in range(4): unpack(ST+2*i,ST+2*i+1,vROW+i)
a("s_waitcnt lgkmcnt(0)")
for i in range(8): a("v_sub_f32 v%d, v%d, v8"%(ST+i,ST+i))
for i in range(4): a("v_cvt_pk_bf16_f32 v%d, v%d, v%d"%(vROW+i,ST+2*i,ST+2*i+1))
for i in range(4): unpack(ST+2*i,ST+2*i+1,vROW+i)
for i in range(8): a("v_mul_f32 v%d, v%d, v9"%(ST+i,ST+i))
for i in range(4): a("v_cvt_pk_bf16_f32 v%d, v%d, v%d"%(vROW+i,ST+2*i,ST+2*i+1))
a("s_lshl_b32 s76, s78, 10", "s_add_u32 s76, s76, 0x%x"%WS_XSEL, "buffer_store_dwordx4 %s, v%d, %s, s76 offen sc1"%(vr(vROW,4),vL16,sr(sWS,4)))
a("v_ashrrev_i32 v6, 31, v7", "v_not_b32 v6, v6", "v_or_b32 v6, 0x80000000, v6", "v_xor_b32 v6, v6, v7", "v_and_b32 v6, 0xffff0000, v6",
  "v_mul_f32 v6, 0x%x, v6"%f2u(-1.4426950408889634), "v_exp_f32 v6, v6", "v_add_f32 v6, 1.0, v6", "v_rcp_f32 v6, v6",
  "v_cvt_pk_bf16_f32 v6, v6, v6", "v_and_b32 v6, 0xffff0000, v6", "v_or_b32 v9, s99, v6", "v_mov_b32 v8, s%d"%sNONCE, "v_mov_b32 v6, 0")
a("s_lshl_b32 s76, s78, 3", "s_add_u32 s76, s76, 0x%x"%WS_SEL, "s_mov_b64 exec, 1", "s_waitcnt vmcnt(0)", "buffer_store_dwordx2 v[8:9], v6, %s, s76 offen sc1"%sr(sWS,4), "s_mov_b64 exec, -1")
a.label("L_NOSEL")
stamp("rank done")
a("s_cmp_lt_u32 s%d, 4"%sW, "s_cbranch_scc0 L_P2", "s_setprio 2"); a.label("L_P2")
a("s_cmp_eq_u32 s%d, 0"%sFB, "s_cbranch_scc1 L_FAST")
a("v_mov_b32 v6, 0xff800000", "v_mov_b32 v7, v%d"%vL16, "s_mov_b32 s%d, 64"%sCNT)
a.label("L_MAXP")
a("ds_read_b128 %s, v7"%vr(KF[0],4), "v_add_u32 v7, 2048, v7", "s_waitcnt lgkmcnt(0)", mfma32(S[0],KF[0],vQ,None))
a("v_max3_f32 v6, v%d, v%d, v6"%(S[0],S[0]+1))
for i in range(2,16,2): a("v_max3_f32 v6, v%d, v%d, v6"%(S[0]+i,S[0]+i+1))
a("s_sub_u32 s%d, s%d, 1"%(sCNT,sCNT), "s_cmp_lg_u32 s%d, 0"%sCNT, "s_cbranch_scc1 L_MAXP")
a("v_mov_b32 v7, v6", "v_permlane32_swap_b32 v6, v7", "v_max_f32 v6, v6, v7")
for i in range(16): a("v_sub_f32 v%d, 0, v6"%(NEGM+i), "v_mov_b32 v%d, 0"%(O+i))
run(0,16,3,True)
a("s_branch L_ATT_DONE")
a.label("L_FAST")
run(24,10,2,True)
a.label("L_ATT_DONE")
stamp("att done")
a("s_setprio 3")
a("s_nop 9")
a("v_rcp_f32 v6, v%d"%(O+8))
for i in range(8): a("v_mul_f32 v%d, v%d, v6"%(O+i,O+i))
for i in range(4): a("v_cvt_pk_bf16_f32 v%d, v%d, v%d"%(O+i,O+2*i,O+2*i+1))
a("s_lshl_b32 s75, s%d, 3"%sH, "s_add_u32 s75, s75, s%d"%sQB, "s_lshl_b32 s75, s75, 3", "s_add_u32 s75, s75, s%d"%sW, "s_lshl_b32 s75, s75, 10", "s_add_u32 s75, s75, 0x%x"%WS_O)
a("buffer_store_dwordx4 %s, v%d, %s, s75 offen sc1"%(vr(O,4),vL16,sr(sWS,4)))
a("s_lshl_b32 s76, s%d, 3"%sQB, "s_add_u32 s76, s76, s%d"%sW, "s_lshl_b32 s76, s76, 5", "s_add_u32 s76, s76, s%d"%sH, "s_lshl_b32 s76, s76, 2", "s_add_u32 s76, s76, 0x%x"%WS_FO)
a("v_mov_b32 v8, s%d"%sNONCE, "v_mov_b32 v6, 0", "s_mov_b64 exec, 1", "s_waitcnt vmcnt(0)", "buffer_store_dword v8, v6, %s, s76 offen sc1"%sr(sWS,4), "s_mov_b64 exec, -1")
a("s_setprio 0")
stamp("O pub")
FG=ST; FU=ST+16; FX=ST+32; FD=ST+40
vSL=S[1]; vSH=S[1]+1; BB=S[0]
a("s_cmp_eq_u32 s%d, 0"%sFFN, "s_cbranch_scc1 L_NOFFN1")
a("v_and_b32 v6, 1, v1", "v_cmp_eq_u32 vcc, 1, v6", "v_mov_b32 v7, 0x0c0c0100", "v_mov_b32 v8, 0x01000c0c", "v_cndmask_b32 v%d, v7, v8, vcc"%vSL,
  "v_mov_b32 v7, 0x0c0c0302", "v_mov_b32 v8, 0x03020c0c", "v_cndmask_b32 v%d, v7, v8, vcc"%vSH)
DG=S[1]+4; DU=S[1]+8
for s_ in range(4):
    b=BB+4*s_
    a("v_perm_b32 v%d, v%d, v%d, v%d"%(b,FX+2*s_,FX+2*s_,vSL), "v_perm_b32 v%d, v%d, v%d, v%d"%(b+1,FX+2*s_,FX+2*s_,vSH),
      "v_perm_b32 v%d, v%d, v%d, v%d"%(b+2,FX+2*s_+1,FX+2*s_+1,vSL), "v_perm_b32 v%d, v%d, v%d, v%d"%(b+3,FX+2*s_+1,FX+2*s_+1,vSH))
for s_ in range(4):
    a(mfma16(DG,FG+4*s_,BB+4*s_,None if s_==0 else DG), mfma16(DU,FU+4*s_,BB+4*s_,None if s_==0 else DU))
a("s_lshl_b32 s76, s%d, 11"%sW, "s_add_u32 s76, s76, %d"%L_BOUNCE, "v_add_u32 v6, s76, v%d"%vL16)
a("ds_write_b128 v6, %s"%vr(DG,4), "ds_write_b128 v6, %s offset:1024"%vr(DU,4))
a.label("L_NOFFN1")
a("s_waitcnt lgkmcnt(0)", "s_barrier")
stamp("X")
a("s_cmp_eq_u32 s%d, 0"%sFFN, "s_cbranch_scc1 L_NOFFN2")
a("s_cmp_ge_u32 s%d, 4"%sW, "s_cbranch_scc1 L_FFN_B")
a("v_lshlrev_b32 v6, 2, v0", "v_add_u32 v6, %d, v6"%L_BOUNCE)
for w_ in range(8): a("ds_read_b32 v%d, v6 offset:%d"%(BB+w_,w_*2048), "ds_read_b32 v%d, v6 offset:%d"%(BB+8+w_,w_*2048+1024));
a("v_bfe_u32 v7, v0, 3, 3", "v_lshlrev_b32 v7, 6, v7", "v_bfe_u32 v8, v0, 6, 2", "v_lshl_add_u32 v7, v8, 4, v7", "v_and_b32 v8, 3, v0", "v_lshl_add_u32 v7, v8, 2, v7",
  "v_bfe_u32 v8, v0, 2, 1", "v_lshl_add_u32 v7, v8, 1, v7", "v_add_u32 v7, %d, v7"%L_H)
a("s_waitcnt lgkmcnt(0)")
for w_ in range(1,8): a("v_add_f32 v%d, v%d, v%d"%(BB,BB,BB+w_), "v_add_f32 v%d, v%d, v%d"%(BB+8,BB+8,BB+8+w_))
bf16r(BB,BB); bf16r(BB+8,BB+8)
a("v_mul_f32 v8, 0x%x, v%d"%(f2u(-1.4426950408889634),BB), "v_exp_f32 v8, v8", "v_add_f32 v8, 1.0, v8", "v_rcp_f32 v8, v8", "v_mul_f32 v8, v8, v%d"%BB)
bf16r(8,8)
a("v_mul_f32 v8, v8, v%d"%(BB+8), "v_cvt_pk_bf16_f32 v8, v8, v8", "ds_write_b16 v7, v8")
a.label("L_FFN_B")
a("s_waitcnt lgkmcnt(0)", "s_barrier")
a("v_bfe_u32 v6, v1, 1, 3", "v_lshlrev_b32 v6, 6, v6", "v_lshrrev_b32 v7, 4, v1", "v_lshl_add_u32 v6, v7, 3, v6", "v_add_u32 v6, %d, v6"%L_H)
a("ds_read_b64 %s, v6"%vr(FX,2), "ds_read_b64 %s, v6 offset:32"%vr(FX+2,2))
a("v_bfe_u32 v8, v1, 1, 3", "v_lshlrev_b32 v8, 11, v8", "v_and_b32 v9, 1, v1", "v_lshl_add_u32 v8, v9, 10, v8", "v_lshl_add_u32 v8, v7, 4, v8")
a("s_lshl_b32 s76, s2, 14", "s_lshl_b32 s77, s%d, 7"%sW, "s_add_u32 s76, s76, s77", "s_add_u32 s76, s76, 0x%x"%WS_PART)
a("s_waitcnt lgkmcnt(0)")
for u in range(2):
    b=BB+4*u
    a("v_perm_b32 v%d, v%d, v%d, v%d"%(b,FX+2*u,FX+2*u,vSL), "v_perm_b32 v%d, v%d, v%d, v%d"%(b+1,FX+2*u,FX+2*u,vSH),
      "v_perm_b32 v%d, v%d, v%d, v%d"%(b+2,FX+2*u+1,FX+2*u+1,vSL), "v_perm_b32 v%d, v%d, v%d, v%d"%(b+3,FX+2*u+1,FX+2*u+1,vSH))
for u in range(2):
    a(mfma16(DG,FD+4*u,BB+4*u,None if u==0 else DG), mfma16(DU,FD+8+4*u,BB+4*u,None if u==0 else DU))
a("buffer_store_dwordx4 %s, v8, %s, s76 offen sc1"%(vr(DG,4),sr(sWS,4)), "buffer_store_dwordx4 %s, v8, %s, s76 offen offset:64 sc1"%(vr(DU,4),sr(sWS,4)))
a("s_lshr_b32 s76, s%d, 1"%sW, "s_mul_i32 s76, s76, 448", "s_lshl_b32 s77, s2, 3", "s_add_u32 s76, s76, s77", "s_and_b32 s77, s%d, 1"%sW, "s_lshl_b32 s77, s77, 2", "s_add_u32 s76, s76, s77", "s_add_u32 s76, s76, 0x%x"%WS_FF)
a("v_mov_b32 v8, s%d"%sNONCE, "v_mov_b32 v6, 0", "s_mov_b64 exec, 1", "s_waitcnt vmcnt(0)", "buffer_store_dword v8, v6, %s, s76 offen sc1"%sr(sWS,4), "s_mov_b64 exec, -1")
a.label("L_NOFFN2")
stamp("ffn done")
vSELT=S[1]+12
a("v_lshlrev_b32 v6, 3, v1", "s_mov_b32 s76, 0x%x"%WS_SEL)
poll(vSELT,2,6,"s76",8,3)
a("s_lshl_b32 s76, s%d, 3"%sQB, "s_add_u32 s76, s76, s%d"%sTT)
a("v_bfe_u32 v6, v%d, 5, 6"%(vSELT+1), "s_mov_b64 exec, 0xff", "v_cmp_eq_u32 vcc, s76, v6", "s_mov_b64 exec, -1", "s_mov_b32 s98, vcc_lo")
a("s_lshl_b32 s77, s76, 7", "s_lshl_b32 s78, s%d, 4"%sW, "s_add_u32 s77, s77, s78", "s_add_u32 s77, s77, 0x%x"%WS_FO, "v_lshlrev_b32 v6, 2, v1")
poll(ST,1,6,"s77",4,4)
stamp("poll O")
a("s_lshl_b32 s77, s%d, 18"%sW, "s_lshl_b32 s78, s76, 10", "s_add_u32 s77, s77, s78", "s_add_u32 s77, s77, 0x%x"%WS_O)
for i in range(4):
    a("buffer_load_dwordx4 %s, v%d, %s, s77 offen sc1"%(vr(ST+4*i,4),vL16,sr(sWS,4)))
    if i<3: a("s_add_u32 s77, s77, 0x10000")
a("s_cmp_eq_u32 s98, 0", "s_cbranch_scc1 L_NOY")
a("s_mul_i32 s77, s%d, 448"%sCG, "s_add_u32 s77, s77, 0x%x"%WS_FF, "v_lshlrev_b32 v6, 3, v1")
poll(S[0],2,6,"s77",56,5)
a("v_lshrrev_b32 v6, 5, v0", "v_lshlrev_b32 v6, 14, v6", "v_bfe_u32 v7, v0, 4, 1", "v_lshl_add_u32 v6, v7, 10, v6", "v_and_b32 v8, 15, v0", "v_lshl_add_u32 v6, v8, 4, v6")
a("v_lshlrev_b32 v7, 8, v7", "v_lshl_add_u32 v7, v8, 4, v7", "v_add_u32 v7, %d, v7"%L_Y)
a("s_mov_b32 s97, s98")
a.label("L_YLOOP")
a("s_ff1_i32_b32 s96, s97", "s_bitset0_b32 s97, s96")
a("s_lshl_b32 s77, s96, 11", "s_lshl_b32 s78, s%d, 8"%sCG, "s_add_u32 s77, s77, s78", "s_add_u32 s77, s77, 0x%x"%WS_PART)
for i in range(4): a("v_mov_b32 v%d, 0"%(S[0]+12+i))
for i in range(3):
    a("buffer_load_dwordx4 %s, v6, %s, s77 offen sc1"%(vr(S[0]+4*i,4),sr(sWS,4)), "s_add_u32 s77, s77, 0x40000")
a("s_cmp_ge_u32 s%d, 4"%sW, "s_cbranch_scc1 L_Y3", "buffer_load_dwordx4 %s, v6, %s, s77 offen sc1"%(vr(S[0]+12,4),sr(sWS,4)))
a.label("L_Y3")
a("s_lshl_b32 s78, s96, 9", "v_add_u32 v8, s78, v7", "s_waitcnt vmcnt(0)")
for i in range(4): a("v_add_f32 v%d, v%d, v%d"%(S[0]+i,S[0]+i,S[0]+4+i), "v_add_f32 v%d, v%d, v%d"%(S[0]+8+i,S[0]+8+i,S[0]+12+i))
for i in range(4): a("v_add_f32 v%d, v%d, v%d"%(S[0]+i,S[0]+i,S[0]+8+i))
for i in range(4): a("ds_add_f32 v8, v%d offset:%d"%(S[0]+i,4*i))
a("s_cmp_lg_u32 s97, 0", "s_cbranch_scc1 L_YLOOP")
a.label("L_NOY")
a("s_lshl_b32 s77, s%d, 12"%sW, "v_add_u32 v6, s77, v%d"%vL16)
for i in range(4):
    a("s_waitcnt vmcnt(%d)"%(3-i), "ds_write_b128 v6, %s offset:%d"%(vr(ST+4*i,4),1024*i))
a("s_waitcnt lgkmcnt(0)", "s_barrier")
stamp("Y")
a("s_cmp_lg_u32 s2, 0", "s_cbranch_scc1 L_NON", "s_cmp_lg_u32 s%d, 0"%sW, "s_cbranch_scc1 L_NON")
a("v_mov_b32 v8, s%d"%sNONCE, "v_mov_b32 v6, 0", "s_mov_b64 exec, 1", "buffer_store_dword v8, v6, %s, 0 offen"%sr(sWS,4), "s_mov_b64 exec, -1")
a.label("L_NON")
a("s_lshr_b32 s77, s%d, 2"%sW, "s_lshl_b32 s77, s77, 14", "v_add_u32 v6, s77, v%d"%vL16)
OF=ST
for i in range(8): a("ds_read_b128 %s, v6 offset:%d"%(vr(OF+4*i,4),1024*i))
for i in range(16):
    if i<8: a("s_waitcnt lgkmcnt(7)")
    else: a("s_waitcnt lgkmcnt(%d)"%(15-i))
    a(mfma32(O,WO+4*i,OF+4*(i&7),None if i==0 else O))
    if i<8: a("ds_read_b128 %s, v6 offset:%d"%(vr(OF+4*i,4),1024*(i+8)))
a("s_cmp_eq_u32 s98, 0", "s_cbranch_scc1 L_NOG")
a("v_and_b32 v7, 15, v0", "v_lshlrev_b32 v7, 4, v7", "v_add_u32 v7, %d, v7"%L_Y, "v_lshrrev_b32 v8, 4, v0")
a.label("L_GLOOP")
a("s_ff1_i32_b32 s96, s98", "s_bitset0_b32 s98, s96", "v_readlane_b32 s77, v%d, s96"%(vSELT+1))
a("s_and_b32 s78, s77, 31", "s_and_b32 s77, s77, 0xffff0000", "s_lshl_b32 s79, s96, 9", "v_add_u32 v9, s79, v7")
a("v_cmp_eq_u32 vcc, s78, v8", "s_and_saveexec_b64 s[%d:%d], vcc"%(sU[0],sU[1]), "s_cbranch_execz L_GSKIP")
Y0=S[0]
a("ds_read_b128 %s, v9"%vr(Y0,4), "ds_read_b128 %s, v9 offset:256"%vr(Y0+4,4), "s_waitcnt lgkmcnt(0)")
for i in range(4): a("v_cvt_pk_bf16_f32 v%d, v%d, v%d"%(Y0+8+i,Y0+i,Y0+4+i))
for i in range(4): unpack(Y0+2*i,Y0+2*i+1,Y0+8+i)
for i in range(8): a("v_mul_f32 v%d, s77, v%d"%(Y0+i,Y0+i))
for i in range(4): a("v_cvt_pk_bf16_f32 v%d, v%d, v%d"%(Y0+8+i,Y0+2*i,Y0+2*i+1))
for i in range(4): unpack(Y0+2*i,Y0+2*i+1,Y0+8+i)
for i in range(4): unpack(vG+2*i,vG+2*i+1,vXN+i)
for i in range(8): a("v_add_f32 v%d, v%d, v%d"%(vG+i,vG+i,Y0+i))
for i in range(4): a("v_cvt_pk_bf16_f32 v%d, v%d, v%d"%(Y0+8+i,vG+2*i,vG+2*i+1))
for i in range(4): unpack(vG+2*i,vG+2*i+1,Y0+8+i)
silu8(Y0)
a.label("L_GSKIP")
a("s_mov_b64 exec, -1", "s_cmp_lg_u32 s98, 0", "s_cbranch_scc1 L_GLOOP")
a.label("L_NOG")
a("v_and_b32 v6, 31, v1", "v_mul_u32_u24 v6, %d, v6"%SX_ROW, "v_lshrrev_b32 v7, 5, v1", "v_lshl_add_u32 v6, v7, 4, v6",
  "s_lshr_b32 s77, s%d, 2"%sW, "s_mul_i32 s77, s77, %d"%SX_HALF, "s_and_b32 s78, s%d, 3"%sW, "s_lshl_b32 s78, s78, 7", "s_add_u32 s77, s77, s78", "s_add_u32 s77, s77, %d"%L_SX, "v_add_u32 v6, s77, v6")
a("v_lshrrev_b32 v7, 4, v0", "v_mul_u32_u24 v7, %d, v7"%SX_ROW, "v_and_b32 v8, 15, v0", "v_lshl_add_u32 v7, v8, 5, v7", "v_add_u32 v7, %d, v7"%L_SX)
a("s_nop 7")
for g in range(4): a("ds_write_b128 v6, %s offset:%d"%(vr(O+4*g,4),32*g))
a("s_waitcnt lgkmcnt(0)", "s_barrier")
E=S[0]
a("ds_read_b128 %s, v7"%vr(E,4), "ds_read_b128 %s, v7 offset:16"%vr(E+4,4), "ds_read_b128 %s, v7 offset:%d"%(vr(E+8,4),SX_HALF), "ds_read_b128 %s, v7 offset:%d"%(vr(E+12,4),SX_HALF+16))
a("s_waitcnt lgkmcnt(0)")
for i in range(8): a("v_add_f32 v%d, v%d, v%d"%(E+i,E+i,E+8+i))
for i in range(4): a("v_cvt_pk_bf16_f32 v%d, v%d, v%d"%(E+8+i,E+2*i,E+2*i+1))
for i in range(4): unpack(E+2*i,E+2*i+1,E+8+i)
for i in range(8): a("v_mul_f32 v%d, v%d, v%d"%(E+i,E+i,vG+i))
for i in range(4): a("v_cvt_pk_bf16_f32 v%d, v%d, v%d"%(E+8+i,E+2*i,E+2*i+1))
for i in range(4): unpack(E+2*i,E+2*i+1,E+8+i)
for i in range(8): a("v_add_f32 v%d, v%d, v%d"%(E+i,E+i,vXF32+i))
PERT=[float(x.split('=')[1]) for x in sys.argv if x.startswith('--perturb=')]
if PERT:
    a("s_or_b32 s77, s2, s%d"%sW, "s_cmp_lg_u32 s77, 0", "s_cbranch_scc1 L_NOPERT", "s_mov_b64 exec, 1", "v_add_f32 v%d, 0x%x, v%d"%(E,f2u(PERT[0]),E), "s_mov_b64 exec, -1")
    a.label("L_NOPERT")
for i in range(4): a("v_cvt_pk_bf16_f32 v%d, v%d, v%d"%(E+8+i,E+2*i,E+2*i+1))
a("buffer_store_dwordx4 %s, v%d, %s, s%d offen"%(vr(E+8,4),vPC,sr(sOUT,4),sPC))
if PROF:
    stamp("end")
    a("s_lshl_b32 s76, s2, 3", "s_add_u32 s76, s76, s%d"%sW, "s_lshl_b32 s76, s76, 8", "s_add_u32 s76, s76, 0x%x"%WS_DBG, "v_lshlrev_b32 v6, 2, v1",
      "buffer_store_dword v%d, v6, %s, s76 offen"%(vSTAMP,sr(sWS,4)))
a.label("L_END")
a("s_endpgm")

def ex(r): return "v_exp_f32 v%d, v%d"%(r,r)
def cv(d,s_): return "v_cvt_pk_bf16_f32 v%d, v%d, v%d"%(d,s_,s_+1)
vKc=6; vVc=7
def tile(t):
    p=t&1; cur=S[p]; prev=S[1-p]
    e=[ex(cur+i) for i in range(16)]; c=[cv(P+i,cur+2*i) for i in range(8)]
    return ["s_waitcnt lgkmcnt(0)", e[0], e[1], cv(P+7,prev+14), mfma32(prev,KF[1-p],vQ,NEGM),
        "ds_read_b128 %s, v%d offset:%d"%(vr(KF[p],4),vKc,(t+2)*2048), e[2], e[3], mfma32(O,VB[1-p],P+4,O),
        "s_mov_b64 exec, %s"%sr(sVMASK,2),
        "ds_read_b128 %s, v%d offset:%d"%(vr(VA[1-p],4),vVc,(t+1)*2048), "ds_read_b128 %s, v%d offset:%d"%(vr(VB[1-p],4),vVc,(t+1)*2048+512),
        "s_mov_b64 exec, -1",
        c[0],e[4],e[5],c[1],e[6],e[7],c[2],e[8],e[9],c[3],e[10],e[11], mfma32(O,VA[p],P,O), c[4],e[12],e[13],c[5],e[14],e[15],c[6]]
a(".p2align 6")
a.label("L_RUN")
a("v_add_u32 v%d, s%d, v%d"%(vKc,sU[0],vKA), "v_add_u32 v%d, s%d, v%d"%(vVc,sU[0],vVA))
a("ds_read_b128 %s, v%d"%(vr(KF[0],4),vKc), "ds_read_b128 %s, v%d offset:2048"%(vr(KF[1],4),vKc))
a("s_mov_b64 exec, %s"%sr(sVMASK,2), "ds_read_b128 %s, v%d"%(vr(VA[0],4),vVc), "ds_read_b128 %s, v%d offset:512"%(vr(VB[0],4),vVc), "s_mov_b64 exec, -1")
for r in (P+4,P+5,P+6,S[1]+14,S[1]+15): a("v_mov_b32 v%d, 0"%r)
a("s_waitcnt lgkmcnt(3)", mfma32(S[0],KF[0],vQ,NEGM), "s_nop 11")
a(".p2align 6")
a.label("L_RUN_LOOP")
body=[]
for t in range(4): body+=tile(t)
assert not check_seq(body+body), check_seq(body+body)
a(*body)
a("v_add_u32 v%d, 0x2000, v%d"%(vKc,vKc), "v_add_u32 v%d, 0x2000, v%d"%(vVc,vVc))
a("s_cmp_le_u32 s%d, 8"%sJOB, "s_cbranch_scc1 L_JOBS")
a.label("L_JOB_RET")
a("s_sub_u32 s%d, s%d, 1"%(sCNT,sCNT), "s_cmp_lg_u32 s%d, s%d"%(sCNT,sSW), "s_cbranch_scc1 L_NOSW", "s_setprio 0")
a.label("L_NOSW")
a("s_cmp_lg_u32 s%d, 0"%sCNT, "s_cbranch_scc1 L_RUN_LOOP")
a(cv(P+7,S[1]+14), "s_nop 1", mfma32(O,VB[1],P+4,O), "s_waitcnt lgkmcnt(0)", "s_setpc_b64 %s"%sr(sRET,2))
vWOd=8; vWOr=9
a.label("L_JOBS")
a("s_lshl_b32 s93, s%d, 11"%sW, "s_add_u32 s93, s93, %d"%L_BOUNCE)
for j in range(1,9): a("s_cmp_eq_u32 s%d, %d"%(sJOB,j), "s_cbranch_scc1 L_JOB%d"%j)
def wo_dma(j):
    a("s_lshr_b32 s94, s%d, 2"%sW, "s_lshl_b32 s94, s94, 18", "s_lshl_b32 s95, s%d, 8"%sCG, "s_add_u32 s94, s94, s95", "s_and_b32 s95, s%d, 3"%sW, "s_lshl_b32 s95, s95, 6", "s_add_u32 s94, s94, s95",
      "s_add_u32 s94, s94, %d"%(j*32*1024), "s_mov_b32 m0, s93", "s_add_u32 s93, s93, 1024")
    a("buffer_load_dwordx4 v%d, %s, s94 offen lds"%(vWOd,sr(sWO,4)), "s_mov_b32 m0, s93", "s_add_u32 s94, s94, 16384")
    a("buffer_load_dwordx4 v%d, %s, s94 offen lds"%(vWOd,sr(sWO,4)))
def wo_read(j):
    a("s_waitcnt vmcnt(0)")
    for u in range(2):
        r=WO+8*j+4*u
        a("ds_read_b64_tr_b16 %s, v%d offset:%d"%(vr(r,2),vWOr,u*1024), "ds_read_b64_tr_b16 %s, v%d offset:%d"%(vr(r+2,2),vWOr,u*1024+512))
def job_end():
    a("s_add_u32 s%d, s%d, 1"%(sJOB,sJOB), "s_branch L_JOB_RET")
a("v_lshrrev_b32 v8, 2, v1", "v_lshlrev_b32 v8, 10, v8", "v_and_b32 v9, 3, v1", "v_lshl_add_u32 v8, v9, 4, v8")
a("v_lshlrev_b32 v9, 3, v9", "v_bfe_u32 v%d, v1, 4, 1"%ST, "v_lshl_add_u32 v9, v%d, 5, v9"%ST, "v_bfe_u32 v%d, v1, 2, 2"%ST, "v_lshl_add_u32 v9, v%d, 6, v9"%ST,
  "v_lshrrev_b32 v%d, 5, v1"%ST, "v_lshl_add_u32 v9, v%d, 8, v9"%ST, "v_add_u32 v9, s93, v9")
wo_dma(0)
a("s_cmp_eq_u32 s%d, 0"%sFFN, "s_cbranch_scc1 L_J0E")
vFA=ST+55
a("s_movk_i32 s94, %d"%(4*3584), "v_lshrrev_b32 v%d, 4, v1"%vFA, "v_mul_lo_u32 v%d, v%d, s94"%(vFA,vFA), "v_and_b32 v%d, 15, v1"%(FD+14), "v_lshl_add_u32 v%d, v%d, 2, v%d"%(vFA,FD+14,vFA))
a("s_mul_i32 s94, s%d, %d"%(sW,64*3584), "s_lshl_b32 s95, s2, 6", "s_add_u32 s94, s94, s95")
for s_ in range(4):
    for jj in range(4):
        a("buffer_load_dword v%d, v%d, %s, s94 offen"%(FG+4*s_+jj,vFA,sr(sWG,4)), "buffer_load_dword v%d, v%d, %s, s94 offen"%(FU+4*s_+jj,vFA,sr(sWU,4)))
        a("s_add_u32 s94, s94, %d"%(3584 if jj<3 else 13*3584))
a("v_lshrrev_b32 v%d, 4, v1"%vFA, "v_lshlrev_b32 v%d, 12, v%d"%(vFA,vFA), "v_lshl_add_u32 v%d, v%d, 2, v%d"%(vFA,FD+14,vFA))
a("s_lshl_b32 s94, s2, 15", "s_lshl_b32 s95, s%d, 7"%sW, "s_add_u32 s94, s94, s95")
seq=[(jt,u,jj) for u in range(2) for jt in range(2) for jj in range(4)]
for n,(jt,u,jj) in enumerate(seq):
    if n==8: a("s_add_u32 s94, s94, 16384")
    a("buffer_load_dword v%d, v%d, %s, s94 offen offset:%d"%(FD+8*jt+4*u+jj,vFA,sr(sWD,4),jj*1024+jt*64))
a.label("L_J0E")
job_end()
for j in range(1,9):
    a.label("L_JOB%d"%j)
    wo_read(j-1)
    if j<8:
        a("s_waitcnt lgkmcnt(0)")
        wo_dma(j)
    if j==7:
        a("s_cmp_eq_u32 s%d, 0"%sFFN, "s_cbranch_scc1 L_J7E")
        a("v_lshlrev_b32 v%d, 3, v1"%(FX+2), "s_mov_b32 s94, 0x%x"%WS_SEL)
        save=list(vT)
        vT[2],vT[3]=FX+4,FX+5
        poll(FX,2,FX+2,"s94",8,6)
        vT[2],vT[3]=save[2],save[3]
        a("v_bfe_u32 v%d, v1, 1, 3"%(FX+7), "v_lshlrev_b32 v%d, 10, v%d"%(FX+7,FX+7), "v_lshrrev_b32 v%d, 4, v1"%(FX+6), "v_lshl_add_u32 v%d, v%d, 3, v%d"%(FX+7,FX+6,FX+7))
        a("s_lshl_b32 s94, s%d, 7"%sW, "s_add_u32 s94, s94, 0x%x"%WS_XSEL)
        for s_ in range(4): a("buffer_load_dwordx2 %s, v%d, %s, s94 offen offset:%d sc1"%(vr(FX+2*s_,2),FX+7,sr(sWS,4),32*s_))
        a.label("L_J7E")
    job_end()

lines,npad = fix_hazards(a.lines, verbose='--v' in sys.argv)
hdr = open('recurrent_scan__mha_block__moe_arch_mod__prompt.s.ref').read().split('; Override launch')[0]
txt = hdr + "; @launch grid=(256,1,1) block=(512,1,1) lds=%d\n"%LDS_BYTES
txt += '.amdgcn_target "amdgcn-amd-amdhsa--gfx950"\n.text\n.globl %s\n.p2align 8\n.type %s,@function\n'%(KNAME,KNAME)
txt += "\n".join(("" if l.endswith(':') else "    ")+l for l in lines) + "\n"
txt += '''.section .rodata,"a"
.p2align 6
.amdhsa_kernel %s
  .amdhsa_next_free_vgpr 256
  .amdhsa_next_free_sgpr 102
  .amdhsa_accum_offset 256
  .amdhsa_group_segment_fixed_size 0
  .amdhsa_kernarg_size 88
  .amdhsa_user_sgpr_count 2
  .amdhsa_user_sgpr_kernarg_segment_ptr 1
  .amdhsa_system_sgpr_workgroup_id_x 1
  .amdhsa_float_denorm_mode_32 3
.end_amdhsa_kernel
'''%KNAME
open(OUT,'w').write(txt)
print("wrote",OUT,"lines",len(lines),"auto pads",npad)
```

```python
import re

TRANS = ("v_exp_f32","v_log_f32","v_rcp_f32","v_rsq_f32","v_sqrt_f32","v_sin_f32","v_cos_f32","v_exp_f16","v_rcp_iflag_f32")

def _regs(tok):
    tok = tok.strip()
    neg = tok.lstrip('-')
    m = re.fullmatch(r'abs\((.*)\)|\|(.*)\|', neg)
    if m: neg = m.group(1) or m.group(2)
    m = re.fullmatch(r'([vsa])(\d+)', neg)
    if m: return {(m.group(1), int(m.group(2)))}
    m = re.fullmatch(r'([vsa])\[(\d+):(\d+)\]', neg)
    if m: return {(m.group(1), i) for i in range(int(m.group(2)), int(m.group(3))+1)}
    if neg in ('vcc','vcc_lo','vcc_hi'): return {('x','vcc')}
    if neg in ('exec','exec_lo','exec_hi'): return {('x','exec')}
    if neg == 'm0': return {('x','m0')}
    return set()

class Ins:
    def __init__(self, text):
        self.text = text
        t = text.split(';')[0].strip()
        self.label = t.endswith(':')
        self.directive = t.startswith('.')
        self.op = '' if (self.label or self.directive or not t) else t.split()[0]
        self.real = bool(self.op)
        rest = t[len(self.op):].strip() if self.real else ''
        ops = [o.strip() for o in re.split(r',(?![^\[]*\])', rest)] if rest else []
        mods = []
        if ops:
            parts = ops[-1].split()
            ops[-1] = parts[0] if parts else ''
            mods = parts[1:]
        self.ops = ops; self.mods = mods
        op = self.op
        base = re.sub(r'_(e32|e64|dpp|sdwa)$', '', op)
        self.base = base
        self.w = set(); self.r = set()
        self.mfma = op.startswith('v_mfma')
        self.valu = op.startswith('v_')
        self.trans = base in TRANS
        self.dot = op.startswith('v_dot')
        self.dpp = op.endswith('_dpp') or any(m.startswith(('row_','quad_perm','wave_')) for m in mods)
        self.permlane = op.startswith('v_permlane')
        self.ds = op.startswith('ds_')
        self.vmem = op.startswith(('buffer_','global_'))
        self.salu = op.startswith('s_')
        self.srcC = set(); self.srcAB = set(); self.sdata=set()
        R = [ _regs(o) for o in ops ]
        if self.mfma:
            self.w = R[0]; self.srcAB = R[1]|R[2]; self.srcC = R[3]; self.r = self.srcAB|self.srcC
            self.passes = 8 if '32x32' in op else (2 if '4x4x4' in op else 4)
        elif self.valu:
            if self.permlane and 'swap' in op:
                self.w = R[0]|R[1]; self.r = R[0]|R[1]
            elif base in ('v_add_co_u32','v_sub_co_u32','v_addc_co_u32','v_subb_co_u32','v_subrev_co_u32'):
                self.w = R[0]|R[1]; self.r = set().union(*R[2:])
            else:
                self.w = R[0]; self.r = set().union(*R[1:]) if len(R)>1 else set()
                if base in ('v_fmac_f32','v_dot2c_f32_bf16','v_writelane_b32') or self.dpp or 'UNUSED_PRESERVE' in text:
                    self.r |= R[0]
            self.r_implicit_exec = True
        elif self.ds:
            if base.startswith('ds_read') or '_rtn' in base or base.startswith(('ds_bpermute','ds_permute','ds_swizzle')):
                self.w = R[0]; self.r = set().union(*R[1:])
            else:
                self.r = set().union(*R)
        elif self.vmem:
            lds = 'lds' in mods or '_lds_' in op
            if 'load' in op and not lds:
                self.w = R[0]; self.r = set().union(*R[1:])
            elif 'atomic' in op and 'sc0' in mods:
                self.w = R[0]; self.r = set().union(*R)
            else:
                self.r = set().union(*R)
                if lds: self.r |= {('x','m0')}
                if 'store' in op and ('x4' in op or 'x3' in op):
                    self.sdata = R[0] if op.startswith('buffer') else R[1]
            self.ldsdma = lds
        elif self.salu:
            if base.startswith(('s_cmp','s_cbranch','s_branch','s_waitcnt','s_nop','s_barrier','s_setprio','s_sleep','s_endpgm','s_bitcmp','s_setpc')):
                self.r = set().union(*R) if R else set()
            else:
                self.w = R[0] if R else set(); self.r = set().union(*R[1:]) if len(R)>1 else set()
                if 'saveexec' in base: self.w |= {('x','exec')}
    def states(self):
        if self.op == 's_nop': return int(self.ops[0],0)+1
        return 1 if self.real else 0

def required(prod, cons):
    need = 0
    pw = prod.w
    pv = {x for x in pw if x[0] in 'va'}; ps = {x for x in pw if x[0]=='s' or x==('x','vcc')}
    if prod.mfma:
        n = {8:12,4:8,2:5}[prod.passes]
        if cons.mfma:
            if pv & cons.srcAB: need = max(need, n)
            if pv & cons.srcC:
                if not (cons.srcC == pv and cons.passes==prod.passes): need = max(need, n-1 if prod.passes==2 else n-2)
                elif prod.passes==2: need = max(need, 2)
            if (pv & cons.w) and not (cons.srcC == pv): need = max(need, n-2)
        elif cons.valu or cons.ds or cons.vmem:
            if pv & (cons.r | cons.w): need = max(need, n)
        if cons.valu and not cons.mfma and (prod.srcC & cons.w): need = max(need, {8:7,4:3,2:1}[prod.passes])
        return need
    if prod.valu:
        if cons.mfma and (pv & cons.r): need = max(need, 2)
        if cons.valu and not cons.mfma:
            if prod.trans and not cons.trans and (pv & cons.r): need = max(need, 1)
            if cons.dpp and (pv & cons.r): need = max(need, 2)
            if cons.permlane and (pv & cons.r): need = max(need, 2)
            if cons.base in ('v_readlane_b32','v_readfirstlane_b32') and (pv & cons.r): need = max(need, 1)
            if ps & cons.r:
                need = max(need, 4 if cons.base in ('v_readlane_b32','v_writelane_b32') else 2)
            if prod.dot and (pv & (cons.r|cons.w)):
                same_c = cons.op==prod.op and len(cons.ops)>3 and (pv & _regs(cons.ops[3])) and not (pv & (_regs(cons.ops[1])|_regs(cons.ops[2])))
                if not same_c: need = max(need, 3)
            if 'sdwa' in prod.op and (pv & cons.r): need = max(need,1)
        if prod.dot and (cons.ds or cons.vmem or cons.mfma) and (pv & cons.r): need = max(need,3)
        if prod.trans and (cons.ds or cons.vmem) and (pv & cons.r): need = max(need,1)
        if cons.vmem and (ps & cons.r): need = max(need, 5)
        if cons.salu and (ps & cons.r): need = max(need, 1)
        if cons.op.startswith('s_cbranch_vcc') and ('x','vcc') in ps: need = max(need, 1)
    if prod.salu:
        if ('x','m0') in pw and cons.vmem and getattr(cons,'ldsdma',False): need = max(need,1)
    if prod.vmem and prod.sdata:
        if cons.valu and (prod.sdata & cons.w): need = max(need,2)
        elif (cons.ds or cons.vmem) and (prod.sdata & cons.w): need = max(need,1)
    return need

def fix_hazards(lines, verbose=False):
    out = []
    ins_count = 0
    for t in lines:
        c = Ins(t)
        if c.real:
            dist = 0; need_pad = 0
            for p in reversed(out):
                if not p.real: continue
                if dist >= 13: break
                n = required(p, c)
                if n > dist: need_pad = max(need_pad, n-dist)
                if p.op in ('s_branch','s_setpc_b64','s_endpgm'): break
                dist += p.states()
            if need_pad:
                out.append(Ins("s_nop %d ; auto" % (need_pad-1))); ins_count += 1
                if verbose: print("pad %d before: %s" % (need_pad, t))
        out.append(c)
    return [i.text for i in out], ins_count

def check_seq(lines):
    seq=[Ins(t) for t in lines]; seq=[s for s in seq if s.real]
    bad=[]
    for i,c in enumerate(seq):
        dist=0
        for p in reversed(seq[max(0,i-14):i]):
            n=required(p,c)
            if n>dist: bad.append((p.text,c.text,n,dist))
            dist+=p.states()
    return bad

class Asm:
    def __init__(self):
        self.lines=[]
        self._uid=0
    def __call__(self, *ls):
        for l in ls:
            for x in l.split('\n'):
                x=x.strip()
                if x: self.lines.append(x)
    def label(self, name): self.lines.append(name+':')
    def uid(self, p='L'):
        self._uid+=1; return "%s_%d"%(p,self._uid)

def vr(a,n=1): return "v%d"%a if n==1 else "v[%d:%d]"%(a,a+n-1)
def sr(a,n=1): return "s%d"%a if n==1 else "s[%d:%d]"%(a,a+n-1)
```

```python
import sys, struct
from asmdsl import Asm, fix_hazards, check_seq, vr, sr

KNAME = "recurrent_scan__mha_block__moe_arch_mod__prompt_kernel"
PROF = '--prof' in sys.argv
FORCE_FB = '--force-fallback' in sys.argv
OUT = [a for a in sys.argv[1:] if not a.startswith('--')][0]
def opt(name, default):
    for x in sys.argv:
        if x.startswith('--%s='%name): return type(default)(x.split('=')[1])
    return default
SW1=opt('sw1',1); SW2=opt('sw2',2)

def f2u(x): return struct.unpack('<I', struct.pack('<f', x))[0]
LOG2E=1.4426950408889634
WS_FKV=0x1000; WS_FO=0x5000; WS_SEL=0x7000; WS_FF=0x7200; WS_XSEL=0x8000; WS_ST=0x10000; WS_KEY=0x14000
WS_XID=0xC000; WS_CS=0x700000; WS_PART=0x20000; WS_KV=0x100000; WS_O=0x500000; WS_Q=0xA00000; WS_DBG=0x800000; WS_SIZE=0x1000000
L_KEYS=131072; L_BOUNCE=139264
L_STM=155648; L_MISC=157696; L_KMAX=L_MISC; L_H=L_MISC+512; L_CS=L_MISC+1024
L_DG=L_KEYS; L_OST=0; L_SX=32768; SX_ROW=528; SX_HALF=32*SX_ROW; L_Y=73728
LDS_BYTES=163840
sX,sWQKV,sWS,sWO,sOUT,sWG,sWU,sWD,sWR,sDBG = 28,32,36,40,44,48,52,56,60,64
sNONCE=26; sH=68; sQB=69; sW=70; sTT=71; sCG=72
sRET=80; sCNT=82; sSW=83; sJOB=84; sSIG=85; sPOLL=86; sFFN=87; sVMASK=88; sONES=90; sFB=91
sU=[92,93,94,95,96,97,98]; sTOK=99; sPC=27; sKEY=[3,61]; sPROD=60; sMODE=8
vLANE=1; vL16=2; vQN2=3; vKA=4; vVA=5; vT=[6,7,8,9]
vQ=10; vXP=14; vPC=18; vSTAMP=19
KF=[20,24]; VA=[28,36]; VB=[32,40]; vXN=44
S=[48,64]; P=80; vG=88; O=96; NEGM=112; WO=128; ST=192; vXF32=248
vROW=[ST+48+4,ST+48]; vRK=WO+40

a = Asm()
def srd(s, ptr, size):
    a("s_mov_b32 s%d, s%d"%(s,ptr), "s_and_b32 s%d, s%d, 0xffff"%(s+1,ptr+1), "s_mov_b32 s%d, 0x%x"%(s+2,size), "s_mov_b32 s%d, 0x20000"%(s+3))
nstamp=[0]
def stamp(name):
    if not PROF: return
    k=nstamp[0]; nstamp[0]+=1
    a("s_memtime s[100:101] ; STAMP %d %s"%(k,name), "s_waitcnt lgkmcnt(0)", "v_writelane_b32 v%d, s100, %d"%(vSTAMP,k))
def bf16r(dst, src):
    a("v_cvt_pk_bf16_f32 v%d, v%d, v%d"%(dst,src,src), "v_lshlrev_b32 v%d, 16, v%d"%(dst,dst))
def unpack(lo, hi, src):
    a("v_lshlrev_b32 v%d, 16, v%d"%(lo,src), "v_and_b32 v%d, 0xffff0000, v%d"%(hi,src))
def mfma32(d,A,B,C):
    return "v_mfma_f32_32x32x16_bf16 %s, %s, %s, %s"%(vr(d,16),vr(A,4),vr(B,4),"0" if C is None else vr(C,16))
def mfma16(d,A,B,C):
    return "v_mfma_f32_16x16x32_bf16 %s, %s, %s, %s"%(vr(d,4),vr(A,4),vr(B,4),"0" if C is None else vr(C,4))
LD={1:"buffer_load_dword",2:"buffer_load_dwordx2",4:"buffer_load_dwordx4"}
def set_exec(nl):
    m=(1<<nl)-1
    if nl==64: a("s_mov_b64 exec, -1")
    elif nl<=6: a("s_mov_b64 exec, %d"%m)
    else: a("s_mov_b32 exec_lo, 0x%x"%(m&0xffffffff), "s_mov_b32 exec_hi, 0x%x"%(m>>32))
def poll_issue(vdata,n,vaddr,soff,nl):
    set_exec(nl); a("%s %s, v%d, %s, %s offen sc1"%(LD[n],vr(vdata,n),vaddr,sr(sWS,4),soff)); a("s_mov_b64 exec, -1")
def poll_check(vdata,n,vaddr,soff,nl,code,tags=(0,),first_wait=0,tmp=None):
    L=a.uid('POLL'); D=a.uid('POLLD'); C=a.uid('POLLC')
    t2,t3 = tmp if tmp else (vT[2],vT[3])
    set_exec(nl); a("s_mov_b32 s%d, 0x8000"%sPOLL, "s_waitcnt vmcnt(%d)"%first_wait, "s_branch %s"%C)
    a.label(L)
    a("s_sleep 1", "%s %s, v%d, %s, %s offen sc1"%(LD[n],vr(vdata,n),vaddr,sr(sWS,4),soff), "s_waitcnt vmcnt(0)")
    a.label(C)
    a("v_cmp_ne_u32 vcc, s%d, v%d"%(sNONCE,vdata+tags[0]))
    for t in tags[1:]:
        a("v_cmp_ne_u32 s[%d:%d], s%d, v%d"%(sU[0],sU[1],sNONCE,vdata+t), "s_or_b64 vcc, vcc, s[%d:%d]"%(sU[0],sU[1]))
    a("s_cbranch_vccz %s"%D)
    a("s_sub_u32 s%d, s%d, 1"%(sPOLL,sPOLL), "s_cmp_lg_u32 s%d, 0"%sPOLL, "s_cbranch_scc1 %s"%L)
    a("v_mov_b32 v%d, %d"%(t3,code), "buffer_store_dword v%d, off, %s, 0"%(t3,sr(sDBG,4)))
    a.label(D)
    a("s_mov_b64 exec, -1")
def poll(vdata,n,vaddr,soff,nl,code,tags=(0,),tmp=None):
    poll_issue(vdata,n,vaddr,soff,nl); poll_check(vdata,n,vaddr,soff,nl,code,tags,0,tmp)
def wave_sum(regs):
    for m in ("row_shr:1","row_shr:2","row_shr:4","row_shr:8"):
        for r in regs: a("v_add_f32_dpp v%d, v%d, v%d %s row_mask:0xf bank_mask:0xf bound_ctrl:0"%(r,r,r,m))
    for r in regs: a("v_add_f32_dpp v%d, v%d, v%d row_bcast:15 row_mask:0xa bank_mask:0xf"%(r,r,r))
    for r in regs: a("v_add_f32_dpp v%d, v%d, v%d row_bcast:31 row_mask:0xc bank_mask:0xf"%(r,r,r))

def capture(f):
    save=a.lines; a.lines=[]; f(); r=a.lines; a.lines=save; return r
a.label(KNAME)
a("s_cmp_ge_u32 s2, 0x100", "s_cbranch_scc1 L_END")
a("s_load_dwordx16 s[4:19], s[0:1], 0", "s_load_dwordx4 s[20:23], s[0:1], 64", "s_load_dwordx2 s[24:25], s[0:1], 80")
a("s_and_b32 s%d, s2, 7"%sTT, "s_lshr_b32 s74, s2, 3", "s_lshr_b32 s%d, s74, 2"%sQB, "s_and_b32 s%d, s74, 3"%sCG, "s_lshl_b32 s%d, s%d, 2"%(sH,sTT), "s_add_u32 s%d, s%d, s%d"%(sH,sH,sCG))
a("v_lshrrev_b32 v6, 6, v0", "v_and_b32 v%d, 63, v0"%vLANE, "v_readfirstlane_b32 s%d, v6"%sW, "v_lshlrev_b32 v%d, 4, v%d"%(vL16,vLANE))
a("s_lshl_b32 s78, s%d, 2"%sQB, "s_add_u32 s78, s78, s%d"%sCG)
a("v_lshrrev_b32 v6, 4, v0", "v_lshlrev_b32 v6, 10, v6", "v_and_b32 v7, 15, v0", "v_lshl_add_u32 v%d, v7, 4, v6"%vPC)
a("s_lshl_b32 s75, s%d, 3"%sQB, "s_add_u32 s75, s75, s%d"%sTT, "s_lshl_b32 s75, s75, 15", "s_lshl_b32 s76, s%d, 8"%sCG, "s_add_u32 s%d, s75, s76"%sPC)
a("s_add_u32 s%d, s78, s%d"%(sSIG,sTT), "s_and_b32 s%d, s%d, 7"%(sSIG,sSIG))
a("s_cmp_lt_u32 s%d, 4"%sW, "s_cbranch_scc1 L_GEMM")
AHEAD=opt('ahead',2); SLOT=32768; NSLOT=AHEAD+1
sGS=6; vGS=WO+62; vGA=WO+61; vPD=WO+56; vPA=WO+58
def prof_start():
    if PROF: a("s_memrealtime s[100:101]", "s_waitcnt lgkmcnt(0)", "v_mov_b32 v%d, 0"%vSTAMP, "v_writelane_b32 v%d, s100, 63"%vSTAMP)
    nstamp[0]=0; stamp("start")
def common_setup():
    srd(sWS,24,WS_SIZE); srd(sWO,8,512*1024); srd(sOUT,20,2048*1024); srd(sWG,14,512*3584); srd(sWU,16,512*3584); srd(sWD,18,1792*1024); srd(sDBG,22,256)
    a("s_cmp_lt_u32 s2, 56", "s_cselect_b32 s%d, 1, 0"%sFFN)
    a("s_mov_b32 s%d, 0xffff"%sVMASK, "s_mov_b32 s%d, 0xffff"%(sVMASK+1), "s_mov_b32 s%d, 0x3f803f80"%sONES)
    a("v_mov_b32 v%d, v%d"%(vKA,vL16), "v_and_b32 v6, 15, v1", "v_lshlrev_b32 v6, 4, v6", "v_lshrrev_b32 v7, 5, v1", "v_lshl_add_u32 v6, v7, 8, v6", "v_add_u32 v%d, 1024, v6"%vVA)
    a("v_lshrrev_b32 v%d, 4, v0"%vGA, "v_lshlrev_b32 v%d, 3, v%d"%(vGA,vGA), "s_lshr_b32 s%d, s%d, 15"%(sGS,sPC), "s_lshl_b32 s%d, s%d, 8"%(sGS,sGS), "s_add_u32 s%d, s%d, 0x%x"%(sGS,sGS,WS_ST))
def nonce(): a("s_mul_i32 s%d, s%d, 0x9E3779B1"%(sNONCE,sNONCE), "s_add_u32 s%d, s%d, 0x7F4A7C15"%(sNONCE,sNONCE))
def silu8(tmp):
    for i in range(8): a("v_mul_f32 v%d, 0x%x, v%d"%(tmp+i,f2u(-LOG2E),vG+i))
    for i in range(8): a("v_exp_f32 v%d, v%d"%(tmp+i,tmp+i))
    for i in range(8): a("v_add_f32 v%d, 1.0, v%d"%(tmp+i,tmp+i))
    for i in range(8): a("v_rcp_f32 v%d, v%d"%(tmp+i,tmp+i))
    for i in range(8): a("v_mul_f32 v%d, v%d, v%d"%(vG+i,vG+i,tmp+i))
    for i in range(4): a("v_cvt_pk_bf16_f32 v%d, v%d, v%d"%(tmp+i,vG+2*i,vG+2*i+1))
    for i in range(4): unpack(vG+2*i,vG+2*i+1,tmp+i)
def gcompute(fw):
    for i in range(4): unpack(vXF32+2*i, vXF32+2*i+1, vXP+i)
    poll_check(vGS,2,vGA,"s%d"%sGS,64,8,first_wait=fw,tmp=(S[0],S[0]+1))
    a("v_lshlrev_b32 v6, 16, v%d"%(vGS+1), "v_and_b32 v7, 0xffff0000, v%d"%(vGS+1), "v_rcp_f32 v7, v7")
    for i in range(8): a("v_sub_f32 v%d, v%d, v6"%(vG+i,vXF32+i))
    for i in range(4): a("v_cvt_pk_bf16_f32 v%d, v%d, v%d"%(vXN+i,vG+2*i,vG+2*i+1))
    for i in range(4): unpack(vG+2*i,vG+2*i+1,vXN+i)
    for i in range(8): a("v_mul_f32 v%d, v%d, v7"%(vG+i,vG+i))
    for i in range(4): a("v_cvt_pk_bf16_f32 v%d, v%d, v%d"%(vXN+i,vG+2*i,vG+2*i+1))
    for i in range(4): unpack(vG+2*i,vG+2*i+1,vXN+i)
    silu8(S[0])
def att_init():
    for i in range(16): a("v_mov_b32 v%d, 0"%(O+i), "v_mov_b32 v%d, 0"%(NEGM+i), "v_mov_b32 v%d, s%d"%(VA[0]+i,sONES))
    a("v_mov_b32 v%d, 0"%(ST+32))
    a("s_lshl_b32 s76, s%d, 3"%sW, "v_lshlrev_b32 v6, 6, v1", "v_add_u32 v%d, s76, v6"%vPA)
def rec_off(dst, sblk, slot, base, sh):
    a("s_lshl_b32 s%d, s%d, 3"%(dst,sH), "s_add_u32 s%d, s%d, s%d"%(dst,dst,sblk), "s_lshl_b32 s%d, s%d, %d"%(dst,dst,3+sh), "s_add_u32 s%d, s%d, 0x%x"%(dst,dst,base+(slot<<sh)))
vXD=[20,21]; vWQd=[22,23,24,25]; vWVd=[26,27]
a("s_movk_i32 s73, 3072", "s_sub_u32 s74, s%d, 4"%sW)
a("v_lshrrev_b32 v6, 4, v1", "v_and_b32 v7, 7, v1", "v_xor_b32 v8, v6, v7", "v_lshlrev_b32 v8, 4, v8", "v_lshrrev_b32 v9, 3, v1", "v_lshl_add_u32 v%d, v9, 10, v8"%vXD[0],
  "v_xor_b32 v%d, 64, v%d"%(vXD[1],vXD[0]), "v_add_u32 v%d, %d, v%d"%(vXD[1],8192-1024,vXD[1]))
a("v_lshlrev_b32 v8, 1, v6", "v_xor_b32 v8, v8, v7", "v_lshlrev_b32 v8, 4, v8", "v_mul_lo_u32 v22, v6, s73", "v_add_u32 v22, v22, v8", "v_bfe_u32 v8, v1, 3, 1", "v_lshl_add_u32 v22, v8, 10, v22")
for b in (1,2,3): a("v_add_u32 v%d, %d, v22"%(vWQd[b],b*(4*3072-1024)))
a("v_and_b32 v8, 2, v9", "v_lshlrev_b32 v8, 1, v8", "v_xor_b32 v8, v8, v7", "v_lshlrev_b32 v8, 4, v8", "v_mul_lo_u32 v26, v9, s73", "v_add_u32 v26, v26, v8", "v_add_u32 v26, 2048, v26", "v_add_u32 v27, %d, v26"%(8*3072-1024))
a("s_lshl_b32 s92, s78, 16", "s_lshl_b32 s75, s74, 14", "s_add_u32 s92, s92, s75",
  "s_lshl_b32 s75, s%d, 7"%sTT, "s_mul_i32 s93, s74, %d"%(16*3072), "s_add_u32 s93, s93, s75",
  "s_lshl_b32 s95, s74, 11", "s_lshl_b32 s96, s74, 12", "s_add_u32 s96, s96, 8192", "s_add_u32 s97, s95, 24576")
a("s_waitcnt lgkmcnt(0)")
prof_start()
srd(sX,4,2048*1024); srd(sWQKV,6,512*3072)
def dma(st):
    sb=(st%NSLOT)*SLOT
    a("s_mul_i32 s76, s%d, %d"%(sSIG,64*3072), "s_lshl_b32 s75, s%d, 7"%sSIG, "s_add_u32 m0, s96, %d"%sb, "s_add_u32 s76, s76, s93")
    for b in range(4): a("buffer_load_dwordx4 v%d, %s, s76 offen offset:%d lds"%(vWQd[b],sr(sWQKV,4),1024*b))
    a("s_add_u32 m0, s95, %d"%sb, "s_add_u32 s75, s75, s92")
    for b in range(2): a("buffer_load_dwordx4 v%d, %s, s75 offen offset:%d lds"%(vXD[b],sr(sX,4),1024*b))
    a("s_add_u32 m0, s97, %d"%sb, "s_add_u32 s%d, s%d, 1"%(sSIG,sSIG))
    for b in range(2): a("buffer_load_dwordx4 v%d, %s, s76 offen offset:%d lds"%(vWVd[b],sr(sWQKV,4),1024*b))
    a("s_and_b32 s%d, s%d, 7"%(sSIG,sSIG))
dma(0)
a("s_load_dword s%d, s[24:25], 0"%sNONCE)
for st in range(1,AHEAD): dma(st)
a("buffer_load_dwordx4 %s, v%d, %s, s%d offen"%(vr(vXP,4),vPC,sr(sX,4),sPC))
if PROF: a("s_memtime s[100:101]", "s_waitcnt lgkmcnt(0)", "v_writelane_b32 v%d, s100, 29"%vSTAMP)
common_setup()
a("v_mov_b32 v6, %d"%L_KMAX, "v_mov_b32 v7, 0", "ds_write_b32 v6, v7", "s_waitcnt lgkmcnt(0)")
nonce()
assert AHEAD==2
hSG=32; hCG=36; hXI=52; hTA=54; hSA=55; hCA=56; hXA=57; hT=60
a("s_and_b32 s75, s74, 1", "s_lshr_b32 s76, s74, 1", "s_lshl_b32 s98, s78, 1", "s_add_u32 s98, s98, s76")
a("s_lshl_b32 s79, s98, 8", "s_add_u32 s79, s79, 0x%x"%WS_ST, "v_and_b32 v6, 31, v1", "v_lshlrev_b32 v%d, 3, v6"%hSA, "v_lshrrev_b32 v7, 5, v1",
  "v_lshlrev_b32 v%d, 4, v6"%hCA, "v_lshl_add_u32 v%d, v7, 12, v%d"%(hCA,hCA), "s_lshl_b32 s7, s%d, 13"%sTT, "s_lshl_b32 s76, s75, 9", "s_add_u32 s7, s7, s76", "s_add_u32 s7, s7, 0x%x"%WS_CS)
a("s_lshl_b32 s76, s%d, 8"%sTT, "s_add_u32 s76, s76, 0x%x"%WS_XID, "v_add_u32 v%d, s76, v%d"%(hXA,hSA))
a("s_lshl_b32 s76, s%d, 3"%sH, "s_add_u32 s76, s76, s%d"%sQB, "s_lshl_b32 s77, s76, 13", "s_lshl_b32 s76, s76, 14", "s_lshl_b32 s75, s74, 10", "s_add_u32 s76, s76, s75", "s_add_u32 s76, s76, 0x%x"%WS_KV,
  "s_lshl_b32 s75, s74, 11", "s_add_u32 s77, s77, s75", "s_add_u32 s77, s77, 0x%x"%(WS_Q-1024), "s_lshl_b32 s75, s%d, 9"%sH, "s_add_u32 s75, s75, 0x%x"%((WS_FKV-3072)&0xffffffff),
  "v_mov_b32 v8, s76", "v_mov_b32 v9, s77", "v_cmp_gt_u32 vcc, 8, v1", "v_cndmask_b32 v8, v9, v8, vcc", "v_mov_b32 v9, s75", "v_cmp_gt_u32 vcc, 24, v1", "v_cndmask_b32 v8, v9, v8, vcc",
  "v_lshl_add_u32 v%d, v1, 7, v8"%hTA)
a("s_getreg_b32 s94, hwreg(HW_REG_XCC_ID, 0, 4)")
def p_loads():
    a("buffer_load_dwordx2 %s, v%d, %s, s79 offen sc1"%(vr(hSG,2),hSA,sr(sWS,4)))
    for k_ in range(4): a("buffer_load_dwordx4 %s, v%d, %s, s7 offen offset:%d sc1"%(vr(hCG+4*k_,4),hCA,sr(sWS,4),1024*k_))
    a("buffer_load_dwordx2 %s, v%d, %s, 0 offen sc1"%(vr(hXI,2),hXA,sr(sWS,4)))
def digest():
    L=a.uid('POLL'); D=a.uid('POLLD'); C=a.uid('POLLC')
    a("s_mov_b32 s%d, 0x8000"%sPOLL, "s_waitcnt vmcnt(9)", "s_branch %s"%C)
    a.label(L); a("s_sleep 1"); p_loads(); a("s_waitcnt vmcnt(0)")
    a.label(C)
    a("v_cmp_ne_u32 vcc, s%d, v%d"%(sNONCE,hSG))
    for r in (hCG+3,hCG+7,hCG+11,hCG+15,hXI): a("v_cmp_ne_u32 s[4:5], s%d, v%d"%(sNONCE,r), "s_or_b64 vcc, vcc, s[4:5]")
    a("s_cbranch_scc0 %s"%D, "s_sub_u32 s%d, s%d, 1"%(sPOLL,sPOLL), "s_cmp_lg_u32 s%d, 0"%sPOLL, "s_cbranch_scc1 %s"%L)
    a("v_mov_b32 v9, 7", "buffer_store_dword v9, off, %s, 0"%sr(sDBG,4))
    a.label(D)
    a("v_cmp_ne_u32 vcc, s94, v%d"%(hXI+1), "v_and_b32 v6, 0xffff0000, v%d"%(hSG+1), "v_rcp_f32 v%d, v6"%(hT+4), "s_mov_b32 s76, 0x01000100", "v_perm_b32 v%d, v%d, v%d, s76"%(hT,hSG+1,hSG+1), "v_xor_b32 v%d, 0x80008000, v%d"%(hT,hT))
    a("s_cmp_lg_u64 vcc, 0", "s_cselect_b32 s%d, 1, %d"%(sMODE,opt('remote',0)))
    for k_ in range(3): a("v_add_f32 v%d, v%d, v%d"%(hCG+k_,hCG+k_,hCG+4+k_), "v_add_f32 v%d, v%d, v%d"%(hCG+8+k_,hCG+8+k_,hCG+12+k_))
    for k_ in range(3): a("v_add_f32 v%d, v%d, v%d"%(hCG+k_,hCG+k_,hCG+8+k_))
    for k_ in range(3): a("v_cvt_pk_bf16_f32 v%d, v%d, v%d"%(hCG+4+k_,hCG+k_,hCG+k_))
    for k_ in range(3): a("v_lshlrev_b32 v%d, 16, v%d"%(hCG+4+k_,hCG+4+k_))
    for k_ in range(3): a("v_sub_f32 v%d, v%d, v%d"%(hCG+4+k_,hCG+k_,hCG+4+k_))
    for k_ in range(3): a("v_cvt_pk_bf16_f32 v%d, v%d, v%d"%(hT+1+k_,hCG+k_,hCG+4+k_))
    a("s_lshl_b32 s76, s74, 11", "s_add_u32 s76, s76, %d"%L_DG, "v_lshl_add_u32 v6, v1, 2, s76", "v_mov_b32 v%d, s%d"%(hT+5,sMODE))
    for k_ in range(3): a("ds_write2st64_b32 v6, v%d, v%d offset0:%d offset1:%d"%(hT+2*k_,hT+2*k_+1,2*k_,2*k_+1))
    a("s_waitcnt lgkmcnt(0)")
for i,younger in enumerate((9,9,8,8,8,14,15,1)):
    if i==7: digest()
    a("s_waitcnt vmcnt(%d)"%younger)
    if PROF and i==0: a("s_memtime s[100:101]", "s_waitcnt lgkmcnt(0)", "v_writelane_b32 v%d, s100, 31"%vSTAMP)
    a("s_barrier")
    if i in (0,3,7): stamp("stage%d"%i)
    if i+AHEAD<8: dma(i+AHEAD)
    if i==4: p_loads()
    if i==5:
        set_exec(28 if opt('touch',1) else 1); a("buffer_load_dword v%d, v%d, %s, 0 offen sc1"%(hTA,hTA,sr(sWS,4)), "s_mov_b64 exec, -1")
poll_issue(vGS,2,vGA,"s%d"%sGS,64)
att_init()
a("v_and_b32 v6, 1, v1", "v_lshlrev_b32 v6, 6, v6", "v_lshrrev_b32 v7, 1, v1", "v_lshl_add_u32 v6, v7, 5, v6",
  "s_lshl_b32 s75, s%d, 9"%sH, "s_lshl_b32 s76, s74, 3", "s_add_u32 s75, s75, s76", "s_add_u32 s75, s75, 0x%x"%WS_FKV, "v_add_u32 v6, s75, v6",
  "s_lshl_b32 s75, s%d, 3"%sH, "s_add_u32 s75, s75, s74", "s_lshl_b32 s75, s75, 3", "s_add_u32 s75, s75, s%d"%sQB, "s_lshl_b32 s75, s75, 3", "s_add_u32 s75, s75, 0x%x"%(WS_FKV-1024),
  "v_lshl_add_u32 v7, v1, 8, s75", "v_cmp_gt_u32 vcc, 4, v1", "v_cndmask_b32 v%d, v7, v6, vcc"%(ST+41))
a("s_barrier")
stamp("F")
gcompute(0)
nstamp[0]=7; stamp("g done")
L=a.uid('POLL'); D=a.uid('POLLD')
a("s_mov_b64 exec, 63", "s_mov_b32 s%d, 0x8000"%sPOLL)
a.label(L)
a("buffer_load_dword v%d, v%d, %s, 0 offen sc1"%(ST+40,ST+41,sr(sWS,4)), "s_waitcnt vmcnt(0)", "v_cmp_ne_u32 vcc, s%d, v%d"%(sNONCE,ST+40), "s_cbranch_vccz %s"%D)
a("s_sleep %d"%opt('sleep',4), "s_sub_u32 s%d, s%d, 1"%(sPOLL,sPOLL), "s_cmp_lg_u32 s%d, 0"%sPOLL, "s_cbranch_scc1 %s"%L)
a("v_mov_b32 v9, 1", "buffer_store_dword v9, off, %s, 0"%sr(sDBG,4))
a.label(D)
a("s_mov_b64 exec, -1")
stamp("poll1")
rec_off(75,74,0,WS_KV,11)
a("s_add_u32 s76, s75, 0x10000")
for k_,(sreg,off) in enumerate(((75,0),(75,1024),(76,0),(76,1024),(75,2048),(75,3072),(76,2048),(76,3072))):
    a("buffer_load_dwordx4 %s, v%d, %s, s%d offen offset:%d sc1"%(vr(ST+4*k_,4),vL16,sr(sWS,4),sreg,off))
    if k_==3:
        a("s_lshl_b32 s77, s%d, 3"%sH, "s_add_u32 s77, s77, s%d"%sQB, "s_lshl_b32 s77, s77, 3", "s_add_u32 s77, s77, s74", "s_lshl_b32 s77, s77, 10", "s_add_u32 s77, s77, 0x%x"%WS_Q, "s_add_u32 s79, s77, 4096")
        a("buffer_load_dwordx4 %s, v%d, %s, s77 offen sc1"%(vr(ST+32,4),vL16,sr(sWS,4)), "buffer_load_dwordx4 %s, v%d, %s, s79 offen sc1"%(vr(vQ,4),vL16,sr(sWS,4)))
a("s_lshl_b32 s76, s74, 11", "v_add_u32 v6, s76, v%d"%vL16, "s_lshl_b32 s76, s74, 10", "s_add_u32 s76, s76, %d"%L_BOUNCE, "v_add_u32 v7, s76, v%d"%vL16)
for k_,off in enumerate((0,1024,8192,9216)):
    a("s_waitcnt vmcnt(%d)"%(9-k_), "ds_write_b128 v6, %s offset:%d"%(vr(ST+4*k_,4),off))
a("s_waitcnt vmcnt(5)", "ds_write_b128 v7, %s"%vr(ST+32,4))
for k_,off in enumerate((0,1024,8192,9216)):
    a("s_waitcnt vmcnt(%d)"%(3-k_), "ds_write_b128 v6, %s offset:%d"%(vr(ST+16+4*k_,4),16384+off))
a("s_waitcnt lgkmcnt(0)", "s_barrier")
a("s_branch L_COMMON")
a.label("L_GEMM")
XB=20; WA=36; WB=52; WV=68; A0=128; A1=144; AV=160; vXR=[[96,97,98,99],[100,101,102,103]]; vAQ0=[104,105]; vAQ1=[106,107]; vAVr=[108,109]
vHH=110; vN=111; vMD=112; vSA=114; vCA=115; vWR=176; RR=192; vRS=186; vRQ=188
vON=122; QA=[208,212,216]; CA=[220,224,228]; CM=232; CG=208
a("s_lshl_b32 s%d, s78, 3"%sTOK, "s_add_u32 s%d, s%d, s%d"%(sTOK,sTOK,sTT), "s_lshl_b32 s%d, s%d, 2"%(sTOK,sTOK), "s_add_u32 s%d, s%d, s%d"%(sTOK,sTOK,sW), "s_lshl_b32 s%d, s%d, 1"%(sTOK,sTOK), "s_lshl_b32 s79, s%d, 10"%sTOK)
a("s_waitcnt lgkmcnt(0)")
prof_start()
srd(sX,4,2048*1024); srd(sWR,12,1024)
a("buffer_load_dwordx4 %s, v%d, %s, s79 offen"%(vr(vROW[0],4),vL16,sr(sX,4)), "buffer_load_dwordx4 %s, v%d, %s, s79 offen offset:1024"%(vr(vROW[1],4),vL16,sr(sX,4)))
a("buffer_load_dwordx4 %s, v%d, %s, 0 offen"%(vr(vWR,4),vL16,sr(sWR,4)))
a("s_load_dword s%d, s[24:25], 0"%sNONCE)
a("buffer_load_dwordx4 %s, v%d, %s, s%d offen"%(vr(vXP,4),vPC,sr(sX,4),sPC))
common_setup()
a("s_and_b32 s74, s%d, 1"%sW, "s_lshr_b32 s73, s%d, 1"%sW)
a("s_lshr_b32 s75, s78, 3", "s_and_b32 s76, s%d, 3"%sTT, "s_xor_b32 s75, s75, s76", "s_or_b32 s%d, s75, s73"%sPROD)
a("v_lshrrev_b32 v%d, 5, v1"%vHH, "v_and_b32 v%d, 31, v1"%vN)
a("v_bfe_u32 v6, v1, 1, 3", "v_xor_b32 v7, v6, v%d"%vHH, "v_lshlrev_b32 v7, 4, v7", "v_lshl_add_u32 v7, v%d, 7, v7"%vN, "s_lshl_b32 s75, s73, 12", "v_add_u32 v%d, s75, v7"%vXR[0][0])
for u in (1,2,3): a("v_xor_b32 v%d, %d, v%d"%(vXR[0][u],32*u,vXR[0][0]))
for u in range(4): a("v_add_u32 v%d, 0x10000, v%d"%(vXR[1][u],vXR[0][u]))
a("v_bfe_u32 v6, v1, 2, 2", "v_bfe_u32 v8, v1, 4, 1", "v_and_b32 v9, 3, v1", "v_lshlrev_b32 v9, 3, v9", "s_lshl_b32 s75, s74, 1")
a("v_xor_b32 v7, s75, v6", "v_lshl_add_u32 v7, v7, 5, v9", "v_lshl_add_u32 v7, v8, 7, v7", "v_lshl_add_u32 v7, v6, 8, v7", "v_lshl_add_u32 v7, v%d, 11, v7"%vHH,
  "v_add_u32 v%d, 8192, v7"%vAQ0[0], "v_xor_b32 v%d, 32, v%d"%(vAQ1[0],vAQ0[0]), "v_add_u32 v%d, 0x10000, v%d"%(vAQ0[1],vAQ0[0]), "v_add_u32 v%d, 0x10000, v%d"%(vAQ1[1],vAQ1[0]))
a("v_add_u32 v7, s75, v8", "v_and_b32 v8, 2, v6", "v_xor_b32 v7, v7, v8", "v_lshl_add_u32 v7, v7, 5, v9", "v_lshl_add_u32 v7, v6, 7, v7", "v_lshl_add_u32 v7, v%d, 10, v7"%vHH,
  "v_add_u32 v%d, 24576, v7"%vAVr[0], "v_add_u32 v%d, 0x10000, v%d"%(vAVr[1],vAVr[0]))
R1=[116,117]; R2=[118,119]; R3=[0,0]; R4=[120,121]; R5=[124,125]
for r in R1+R2: a("v_mov_b32 v%d, 0"%r)
a("v_mov_b32 v%d, s%d"%(vON,sONES), "v_mov_b32 v%d, s%d"%(vON+1,sONES))
for r in range(220,236): a("v_mov_b32 v%d, 0"%r)
a("s_lshl_b32 s98, s78, 1", "s_add_u32 s98, s98, s73", "s_lshl_b32 s79, s98, 8", "s_add_u32 s79, s79, 0x%x"%WS_ST, "v_lshlrev_b32 v%d, 3, v%d"%(vSA,vN))
a("v_lshlrev_b32 v%d, 4, v%d"%(vCA,vN), "v_lshl_add_u32 v%d, v%d, 12, v%d"%(vCA,vHH,vCA), "s_lshl_b32 s7, s%d, 13"%sTT, "s_lshl_b32 s75, s74, 9", "s_add_u32 s7, s7, s75", "s_add_u32 s7, s7, 0x%x"%WS_CS)
a("s_waitcnt lgkmcnt(0)")
nonce()
a("s_cmp_lg_u32 s%d, 0"%sW, "s_cbranch_scc1 L_NOXID", "s_getreg_b32 s94, hwreg(HW_REG_XCC_ID, 0, 4)", "v_mov_b32 v84, s%d"%sNONCE, "v_mov_b32 v85, s94",
  "s_lshl_b32 s76, s%d, 5"%sTT, "s_add_u32 s76, s76, s78", "s_lshl_b32 s76, s76, 3", "s_add_u32 s76, s76, 0x%x"%WS_XID,
  "s_mov_b64 exec, 1", "buffer_store_dwordx2 v[84:85], off, %s, s76 sc1"%sr(sWS,4), "s_mov_b64 exec, -1", "s_waitcnt vmcnt(3)")
a.label("L_NOXID")
SM=[62,63]; SR=[4,5]; SP=[96,97]
def both(fmt):
    for t in range(2): a(fmt.format(m=R1[t],v=R2[t],k=R3[t],p=R4[t],r=R5[t]))
EARLY=opt('early',1)
def early_stats():
    a("s_waitcnt vmcnt(2)")
    if EARLY and PROF: a("s_memtime s[100:101]", "s_waitcnt lgkmcnt(0)", "v_writelane_b32 v%d, s100, 30"%vSTAMP)
    for j in range(4):
        for t in range(2):
            if EARLY:
                a("v_dot2_f32_bf16 v%d, v%d, s%d, v%d"%(R1[t],vROW[t]+j,sONES,R1[t]), "v_dot2_f32_bf16 v%d, v%d, v%d, v%d"%(R2[t],vROW[t]+j,vROW[t]+j,R2[t])); continue
            lo,hi=84+2*t,85+2*t
            unpack(lo,hi,vROW[t]+j)
            a("v_add_f32 v%d, v%d, v%d"%(R1[t],R1[t],lo), "v_fmac_f32 v%d, v%d, v%d"%(R2[t],lo,lo), "v_add_f32 v%d, v%d, v%d"%(R1[t],R1[t],hi), "v_fmac_f32 v%d, v%d, v%d"%(R2[t],hi,hi))
    wave_sum(R1+R2)
    both("v_mul_f32 v{m}, 0x3b000000, v{m}"); both("v_mul_f32 v{v}, 0x3b000000, v{v}"); both("v_fma_f32 v{v}, -v{m}, v{m}, v{v}"); both("v_max_f32 v{v}, 0, v{v}")
    both("v_cvt_pk_bf16_f32 v{p}, v{m}, v{v}"); both("v_and_b32 v{v}, 0xffff0000, v{p}"); both("v_add_f32 v{v}, 0x%x, v{v}"%f2u(1e-5))
    both("v_cvt_pk_bf16_f32 v{v}, v{v}, v{v}"); both("v_lshlrev_b32 v{v}, 16, v{v}"); both("v_sqrt_f32 v{v}, v{v}"); both("v_cvt_pk_bf16_f32 v{v}, v{v}, v{v}"); both("v_lshlrev_b32 v{v}, 16, v{v}")
    both("v_rcp_f32 v{r}, v{v}"); both("v_and_b32 v{p}, 0xffff, v{p}"); both("v_or_b32 v{p}, v{p}, v{v}"); both("v_lshlrev_b32 v{m}, 16, v{p}")
    for t in range(2): a("v_readlane_b32 s%d, v%d, 63"%(SP[t],R4[t]), "v_readlane_b32 s%d, v%d, 63"%(SM[t],R1[t]), "v_readlane_b32 s%d, v%d, 63"%(SR[t],R5[t]))
    a("v_mov_b32 v84, s%d"%sNONCE, "v_mov_b32 v85, s%d"%SP[0], "v_lshlrev_b32 v86, 3, v1", "v_writelane_b32 v85, s%d, 1"%SP[1], "s_lshl_b32 s76, s%d, 3"%sTOK, "s_add_u32 s76, s76, 0x%x"%WS_ST)
fill=[[l] for l in capture(early_stats)]
fill.append(["s_mov_b64 exec, 3", "buffer_store_dwordx2 v[84:85], v86, %s, s76 offen sc1"%sr(sWS,4), "s_mov_b64 exec, -1"])
if EARLY:
    if PROF: a("s_memtime s[100:101]", "s_waitcnt lgkmcnt(0)", "v_writelane_b32 v%d, s100, 29"%vSTAMP)
    for it in fill: a(*it)
    fill=[]
    if PROF: a("s_memtime s[100:101]", "s_waitcnt lgkmcnt(0)", "v_writelane_b32 v%d, s100, 31"%vSTAMP)
def reads(i,u):
    sb=(i%NSLOT)*SLOT; hi=sb>>16; sb&=0xffff
    r=["ds_read_b128 %s, v%d offset:%d"%(vr(XB+4*u,4),vXR[hi][u],sb)]
    for reg,ad in ((WA,vAQ0),(WB,vAQ1)):
        r+=["ds_read_b64_tr_b16 %s, v%d offset:%d"%(vr(reg+4*u,2),ad[hi],sb+u*4096), "ds_read_b64_tr_b16 %s, v%d offset:%d"%(vr(reg+4*u+2,2),ad[hi],sb+u*4096+1024)]
    r+=["ds_read_b64_tr_b16 %s, v%d offset:%d"%(vr(WV+4*u,2),vAVr[hi],sb+u*2048), "ds_read_b64_tr_b16 %s, v%d offset:%d"%(vr(WV+4*u+2,2),vAVr[hi],sb+u*2048+512)]
    return r
def mms(u,first=False):
    return [mfma32(A0,WA+4*u,XB+4*u,None if first else A0), mfma32(A1,WB+4*u,XB+4*u,None if first else A1), mfma32(AV,XB+4*u,WV+4*u,None if first else AV)]
GAP=opt('gap',5)
def group(mu, rd, first=False):
    m=mms(mu,first); n=(len(rd)+2)//3
    for k_ in range(3):
        a(m[k_]); part=rd[k_*n:(k_+1)*n]; a(*part); room=GAP-len(part)
        while room>0 and fill:
            it=fill.pop(0); a(*it); room-=len(it)
def qs(u):
    L=a.uid("L_Q")
    a("s_cmp_eq_u32 s%d, 0"%sPROD, "s_cbranch_scc0 %s"%L)
    for hf in range(2):
        for k_,reg in enumerate((WA,WB,WV)):
            a("v_mfma_f32_4x4x4_16b_bf16 %s, %s, %s, %s"%(vr(QA[k_],4),vr(vON,2),vr(reg+4*u+2*hf,2),"0" if (u==0 and hf==0) else vr(QA[k_],4)))
    a.label(L)
def cs_publish():
    L=a.uid("L_CSP")
    a("s_cmp_eq_u32 s%d, 0"%sPROD, "s_cbranch_scc0 %s"%L)
    a("s_lshl_b32 s75, s%d, 10"%sSIG, "s_add_u32 s75, s75, s7", "s_nop 2")
    for k_ in range(3): a("v_permlane32_swap_b32 v%d, v%d"%(QA[k_],QA[k_]+1))
    for k_ in range(3): a("v_add_f32 v%d, v%d, v%d"%(QA[0]+k_,QA[k_],QA[k_]+1)) if k_ else a("v_add_f32 v%d, v%d, v%d"%(QA[0],QA[0],QA[0]+1))
    a("v_mov_b32 v%d, s%d"%(QA[0]+3,sNONCE), "s_mov_b32 exec_hi, 0", "buffer_store_dwordx4 %s, v%d, %s, s75 offen sc1"%(vr(QA[0],4),vCA,sr(sWS,4)), "s_mov_b64 exec, -1")
    a.label(L)
a("s_lshl_b32 s76, s%d, 11"%sW, "s_add_u32 s76, s76, %d"%L_DG, "v_lshl_add_u32 v7, v1, 2, s76", "v_lshl_add_u32 v8, v%d, 4, s76"%vHH)
for i in range(8):
    a("s_barrier")
    if i in (0,3,7): stamp("g")
    if i==0: a(*(reads(0,0)+reads(0,1)))
    elif i<7: group(3,reads(i,0)+reads(i,1))
    else:
        a(*["ds_read_b32 v%d, v7 offset:%d"%(r,256*k_) for k_,r in enumerate((CM,CA[0],CA[1],CA[2],vRS,vMD))])
        group(3,reads(i,0))
        a("s_waitcnt lgkmcnt(7)", mfma32(A0,CA[0],CM,A0), *reads(i,1)[:4]); a(mfma32(A1,CA[1],CM,A1), *reads(i,1)[4:]); a(mfma32(AV,CM,CA[2],AV), "v_mul_f32 v%d, 0x%x, v%d"%(vRQ,f2u(0.25*LOG2E),vRS), "v_readfirstlane_b32 s%d, v%d"%(sMODE,vMD))
    if i==1: cs_publish()
    if i==3: a("buffer_load_dwordx2 %s, v%d, %s, s%d offen sc1"%(vr(vGS,2),vGA,sr(sWS,4),sGS))
    a("s_waitcnt lgkmcnt(7)")
    if i==0: qs(0)
    group(0,reads(i,2),i==0)
    a("s_waitcnt lgkmcnt(7)")
    if i==0: qs(1)
    group(1,reads(i,3))
    a("s_waitcnt lgkmcnt(7)")
    if i==0: qs(2)
    group(2,["ds_read_b128 %s, v8 offset:%d"%(vr(RR+4*g,4),1024+32*g) for g in range(4)] if i==7 else [])
    a("s_waitcnt lgkmcnt(%d)"%(4 if i==7 else 0))
    if i==0: qs(3)
m=mms(3)
a(m[0], "s_barrier", m[1])
a("s_lshl_b32 s75, s%d, 1"%sTT, "s_add_u32 s75, s75, s74", "s_lshl_b32 s75, s75, 7", "s_add_u32 s75, s75, s98", m[2],
  "s_lshl_b32 s77, s75, 10", "s_add_u32 s77, s77, 0x%x"%WS_Q, "s_lshl_b32 s75, s75, 11", "s_add_u32 s75, s75, 0x%x"%WS_KV, "s_add_u32 s76, s75, 0x20000", "s_add_u32 s79, s77, 0x10000")
a("v_bfe_u32 v8, v1, 4, 1", "v_lshlrev_b32 v8, 17, v8", "v_add_u32 v126, v8, v%d"%vVA)
nstamp[0]=4; stamp("F")
def scale(acc,mul):
    for i in range(0,8,2): a("v_pk_mul_f32 %s, %s, %s op_sel_hi:[1,0]"%(vr(acc+i,2),vr(acc+i,2),vr(mul,2)))
    for i in range(4): a("v_cvt_pk_bf16_f32 v%d, v%d, v%d"%(acc+i,acc+2*i,acc+2*i+1))
scale(A0,vRQ); scale(A1,vRQ)
def moded(f):
    L=a.uid("L_MR"); E=a.uid("L_ME")
    a("s_cmp_lg_u32 s%d, 0"%sMODE, "s_cbranch_scc1 %s"%L); f(""); a("s_branch %s"%E); a.label(L); f(" sc1"); a.label(E)
moded(lambda m: a("buffer_store_dwordx4 %s, v%d, %s, s77 offen%s"%(vr(A0,4),vL16,sr(sWS,4),m), "buffer_store_dwordx4 %s, v%d, %s, s79 offen%s"%(vr(A1,4),vL16,sr(sWS,4),m)))
scale(A0+8,vRS); scale(A1+8,vRS)
moded(lambda m: a("buffer_store_dwordx4 %s, v%d, %s, s75 offen%s"%(vr(A0+8,4),vL16,sr(sWS,4),m), "buffer_store_dwordx4 %s, v%d, %s, s76 offen%s"%(vr(A1+8,4),vL16,sr(sWS,4),m)))
a("s_waitcnt lgkmcnt(0)")
for i in range(0,16,2): a("v_pk_mul_f32 %s, %s, %s"%(vr(AV+i,2),vr(AV+i,2),vr(RR+i,2)))
VP=WV+4
for i in range(8): a("v_cvt_pk_bf16_f32 v%d, v%d, v%d"%(VP+i,AV+2*i,AV+2*i+1))
moded(lambda m: a("buffer_store_dwordx4 %s, v126, %s, s75 offen%s"%(vr(VP,4),sr(sWS,4),m), "buffer_store_dwordx4 %s, v126, %s, s75 offen offset:512%s"%(vr(VP+4,4),sr(sWS,4),m)))
stamp("stored")
a("v_mov_b32 v6, 0", "v_mov_b32 v7, 0")
for j in range(4): a("v_dot2_f32_bf16 v6, v%d, v%d, v6"%(A0+8+j,A0+8+j), "v_dot2_f32_bf16 v7, v%d, v%d, v7"%(A1+8+j,A1+8+j))
a("v_max3_f32 v9, |v%d|, |v%d|, |v%d|"%(AV,AV+1,AV+2))
for i in range(3,15,2): a("v_max3_f32 v9, |v%d|, |v%d|, v9"%(AV+i,AV+i+1))
a("v_permlane32_swap_b32 v6, v7", "v_max_f32 v9, |v%d|, v9"%(AV+15), "v_add_f32 v6, v6, v7", "s_mov_b32 s92, 0x5d800000", "v_cmp_nge_f32 vcc, s92, v9")
for sh in (8,4,2,1): a("v_max_u32_dpp v6, v6, v6 row_ror:%d row_mask:0xf bank_mask:0xf"%sh)
a("v_mov_b32 v7, v6", "v_permlane16_swap_b32 v6, v7", "v_max_u32 v9, v6, v7", "s_cmp_lg_u64 vcc, 0", "s_cselect_b32 s92, 0x7f800000, 0", "v_max_u32 v9, s92, v9", "v_mov_b32 v8, s%d"%sNONCE)
a("s_lshl_b32 s77, s%d, 1"%sTT, "s_add_u32 s77, s77, s74", "s_lshl_b32 s77, s77, 4", "s_and_b32 s79, s98, 7", "s_add_u32 s77, s77, s79", "s_lshl_b32 s77, s77, 3", "s_add_u32 s77, s77, s%d"%sQB, "s_lshl_b32 s77, s77, 3", "s_add_u32 s77, s77, 0x%x"%WS_FKV)
a("v_lshlrev_b32 v127, 9, v%d"%vHH, "s_mov_b32 exec_lo, 1", "s_mov_b32 exec_hi, 1", "s_waitcnt vmcnt(0)")
moded(lambda m: a("buffer_store_dwordx2 v[8:9], v127, %s, s77 offen%s"%(sr(sWS,4),m)))
a("s_mov_b64 exec, -1")
stamp("flagged")
gcompute(1)
TT=[AV,AV+8]; R3=[WB,WB+1]; R2=[WB+2,WB+3]
a("v_mov_b32 v%d, 0"%R3[0], "v_mov_b32 v%d, 0"%R3[1])
for t in range(2):
    for i in range(4): unpack(TT[t]+2*i,TT[t]+2*i+1,vROW[t]+i)
    for i in range(8): a("v_subrev_f32 v%d, s%d, v%d"%(TT[t]+i,SM[t],TT[t]+i))
    for i in range(4): a("v_cvt_pk_bf16_f32 v%d, v%d, v%d"%(vROW[t]+i,TT[t]+2*i,TT[t]+2*i+1))
    for i in range(4): unpack(TT[t]+2*i,TT[t]+2*i+1,vROW[t]+i)
    for i in range(8): a("v_mul_f32 v%d, s%d, v%d"%(TT[t]+i,SR[t],TT[t]+i))
    for i in range(4): a("v_cvt_pk_bf16_f32 v%d, v%d, v%d"%(vROW[t]+i,TT[t]+2*i,TT[t]+2*i+1))
for j in range(4):
    for t in range(2): a("v_dot2_f32_bf16 v%d, v%d, v%d, v%d"%(R3[t],vROW[t]+j,vWR+j,R3[t]))
wave_sum(R3)
both("v_cvt_pk_bf16_f32 v{k}, v{k}, v{k}"); both("v_ashrrev_i32 v{v}, 31, v{k}"); both("v_or_b32 v{v}, 0x80000000, v{v}"); both("v_xor_b32 v{k}, v{k}, v{v}"); both("v_and_b32 v{k}, 0xffff0000, v{k}")
for t in range(2): a("v_readlane_b32 s%d, v%d, 63"%(sKEY[t],R3[t]))
a("s_sub_u32 s79, 0xffff, s%d"%sTOK, "s_or_b32 s%d, s%d, s79"%(sKEY[0],sKEY[0]), "s_sub_u32 s79, s79, 1", "s_or_b32 s%d, s%d, s79"%(sKEY[1],sKEY[1]))
a("v_mov_b32 v6, s%d"%sNONCE, "v_mov_b32 v7, s%d"%sKEY[0], "v_lshlrev_b32 v124, 3, v1", "v_writelane_b32 v7, s%d, 1"%sKEY[1])
a("s_lshl_b32 s79, s%d, 3"%sTOK, "s_add_u32 s79, s79, 0x%x"%WS_KEY, "s_mov_b64 exec, 3", "buffer_store_dwordx2 v[6:7], v124, %s, s79 offen sc1"%sr(sWS,4), "s_mov_b64 exec, -1")
att_init()
a("s_lshl_b32 s78, s%d, 9"%sH, "s_add_u32 s78, s78, 0x%x"%WS_FKV)
poll_issue(vPD,2,vPA,"s78",8)
nstamp[0]=8; stamp("poll1")
a("s_lshl_b32 s76, s%d, 10"%sW, "s_add_u32 s76, s76, %d"%L_BOUNCE, "v_add_u32 v7, s76, v%d"%vL16)
a("s_barrier")
a("ds_read_b128 %s, v7"%vr(vQ,4), "s_waitcnt lgkmcnt(0)")
a.label("L_COMMON")
stamp("B1")
NOJOB=99; JOBKV=50
if "--iter" in sys.argv: a("s_mov_b32 s7, 32")
def run(t0, niter, switch_left, job):
    a("s_mov_b32 s%d, %d"%(sCNT,niter))
    if job is not None: a("s_mov_b32 s%d, %d"%(sJOB,job))
    a("s_cmp_lt_u32 s%d, 4"%sW, "s_cselect_b32 s%d, %d, 0x7fff"%(sSW,switch_left))
    a("s_mov_b32 s%d, %d"%(sU[0],t0*2048), "s_call_b64 %s, L_RUN"%sr(sRET,2))
def fetch_flags(issued=False):
    a("s_lshl_b32 s78, s%d, 9"%sH, "s_add_u32 s78, s78, 0x%x"%WS_FKV)
    (poll_check if issued else poll)(vPD,2,vPA,"s78",8,2)
    a("s_mov_b64 exec, 0xff", "v_mov_b32 v9, %d"%L_KMAX, "ds_max_u32 v9, v%d"%(vPD+1), "s_mov_b64 exec, -1")
def fetch_tiles(slots):
    rec_off(75,sW,slots[0],WS_KV,11)
    for n,s_ in enumerate(slots):
        if n and n%2==0: a("s_add_u32 s75, s75, 4096")
        for hf in range(2): a("buffer_load_dwordx4 %s, v%d, %s, s75 offen offset:%d sc1"%(vr(ST+8*(s_-2)+4*hf,4),vL16,sr(sWS,4),(n%2)*2048+1024*hf))
def fetch_keys():
    a("s_lshl_b32 s76, s%d, 11"%sW, "s_add_u32 s76, s76, 0x%x"%WS_KEY)
    for j in range(2): a("buffer_load_dwordx4 %s, v%d, %s, s76 offen offset:%d sc1"%(vr(vRK+4*j,4),vL16,sr(sWS,4),1024*j))
a("s_cmp_lt_u32 s%d, 4"%sW, "s_cbranch_scc1 L_PRIO_A", "s_setprio 1")
fetch_flags(); fetch_tiles((2,3,4,5,6,7)); fetch_keys()
a("s_mov_b32 s%d, %d"%(sJOB,NOJOB), "s_branch L_PRIO_B")
a.label("L_PRIO_A"); a("s_setprio 2", "s_mov_b32 s%d, %d"%(sJOB,JOBKV)); a.label("L_PRIO_B")
run(0,4,SW1,None)
stamp("intA done")
a("s_lshl_b32 s76, s%d, 11"%sW, "s_add_u32 s76, s76, %d"%(2*16384), "v_add_u32 v6, s76, v%d"%vL16, "v_add_u32 v7, 0xc000, v6", "v_mov_b32 v%d, 0"%vQN2, "s_waitcnt vmcnt(0)")
for i in range(6):
    base,off = (6,i*16384) if i<3 else (7,(i-3)*16384)
    a("ds_write_b128 v%d, %s offset:%d"%(base,vr(ST+8*i,4),off), "ds_write_b128 v%d, %s offset:%d"%(base,vr(ST+4+8*i,4),off+1024))
for j in range(4): a("v_dot2_f32_bf16 v%d, v%d, v%d, v%d"%(vQN2,vQ+j,vQ+j,vQN2))
L=a.uid('POLL'); D=a.uid('POLLD')
a("s_mov_b32 s%d, 0x8000"%sPOLL)
a.label(L)
a("v_cmp_ne_u32 vcc, s%d, v%d"%(sNONCE,vRK), "v_cmp_ne_u32 s[92:93], s%d, v%d"%(sNONCE,vRK+2), "v_cmp_ne_u32 s[94:95], s%d, v%d"%(sNONCE,vRK+4), "v_cmp_ne_u32 s[96:97], s%d, v%d"%(sNONCE,vRK+6),
  "s_or_b64 vcc, vcc, s[92:93]", "s_or_b64 s[94:95], s[94:95], s[96:97]", "s_or_b64 vcc, vcc, s[94:95]", "s_cbranch_scc0 %s"%D)
fetch_keys()
a("s_waitcnt vmcnt(0)", "s_sub_u32 s%d, s%d, 1"%(sPOLL,sPOLL), "s_cmp_lg_u32 s%d, 0"%sPOLL, "s_cbranch_scc1 %s"%L)
a("v_mov_b32 v9, 9", "buffer_store_dword v9, off, %s, 0"%sr(sDBG,4))
a.label(D)
a("v_mov_b32 v%d, v%d"%(vRK,vRK+5), "v_mov_b32 v%d, v%d"%(vRK+2,vRK+7), "v_mov_b32 v7, v%d"%vQN2)
a("s_lshl_b32 s76, s%d, 10"%sW, "s_add_u32 s76, s76, %d"%L_KEYS, "v_add_u32 v6, s76, v%d"%vL16, "ds_write_b128 v6, %s"%vr(vRK,4))
a("v_permlane32_swap_b32 v%d, v7"%vQN2, "v_add_f32 v%d, v%d, v7"%(vQN2,vQN2))
a("s_waitcnt lgkmcnt(0)", "s_barrier")
stamp("B2")
a("v_mov_b32 v6, %d"%L_KMAX, "ds_read_b32 v6, v6", "s_cmp_ge_u32 s%d, 4"%sW, "s_cbranch_scc1 L_NOSEL1")
a("s_setprio 2")
a("s_lshl_b32 s76, s%d, 10"%sQB, "s_add_u32 s76, s76, %d"%L_KEYS, "v_add_u32 v8, s76, v%d"%vL16, "ds_read_b128 %s, v8"%vr(ST,4), "s_mov_b32 s78, 0", "s_mov_b32 s77, 0", "s_waitcnt lgkmcnt(0)")
def count(regs):
    for r in regs:
        a("v_cmp_lt_u32 s[92:93], s%d, v%d"%(sKEY[0],r), "v_cmp_lt_u32 s[94:95], s%d, v%d"%(sKEY[1],r))
        a("s_bcnt1_i32_b64 s79, s[92:93]", "s_add_u32 s78, s78, s79", "s_bcnt1_i32_b64 s79, s[94:95]", "s_add_u32 s77, s77, s79")
count(range(ST,ST+4))
a("s_min_u32 s79, s78, s77", "s_cmp_ge_u32 s79, 8", "s_cbranch_scc1 L_NOSEL1")
a("v_add_u32 v8, %d, v%d"%(L_KEYS,vL16))
for j in range(8): a("ds_read_b128 %s, v8 offset:%d"%(vr(ST+4*j,4),1024*j))
a("s_mov_b32 s78, 0", "s_mov_b32 s77, 0", "s_waitcnt lgkmcnt(0)")
count(range(ST,ST+32))
for t,cnt in ((0,78),(1,77)):
    a("s_cmp_ge_u32 s%d, 8"%cnt, "s_cbranch_scc1 L_NOSEL%d"%t)
    a("s_lshl_b32 s76, s%d, 10"%cnt, "s_add_u32 s76, s76, 0x%x"%WS_XSEL, "buffer_store_dwordx4 %s, v%d, %s, s76 offen sc1"%(vr(vROW[t],4),vL16,sr(sWS,4)))
    a("v_mov_b32 v7, s%d"%sKEY[t], "v_ashrrev_i32 v9, 31, v7", "v_not_b32 v9, v9", "v_or_b32 v9, 0x80000000, v9", "v_xor_b32 v9, v9, v7", "v_and_b32 v9, 0xffff0000, v9",
      "v_mul_f32 v9, 0x%x, v9"%f2u(-LOG2E), "v_exp_f32 v9, v9", "v_add_f32 v9, 1.0, v9", "v_rcp_f32 v9, v9",
      "v_cvt_pk_bf16_f32 v9, v9, v9", "v_and_b32 v9, 0xffff0000, v9", "s_add_u32 s76, s%d, %d"%(sTOK,t), "v_or_b32 v9, s76, v9", "v_mov_b32 v8, s%d"%sNONCE)
    a("s_lshl_b32 s76, s%d, 3"%cnt, "s_add_u32 s76, s76, 0x%x"%WS_SEL, "s_mov_b64 exec, 1", "s_waitcnt vmcnt(0)", "buffer_store_dwordx2 v[8:9], off, %s, s76 sc1"%sr(sWS,4), "s_mov_b64 exec, -1")
    a.label("L_NOSEL%d"%t)
a("s_waitcnt lgkmcnt(0)")
a("v_mul_f32 v6, v6, v%d"%vQN2, "s_mov_b32 s76, 0x%x"%f2u(0.0 if FORCE_FB else 44.0*44.0), "v_cmp_nge_f32 vcc, s76, v6", "s_cmp_lg_u64 vcc, 0", "s_cselect_b32 s%d, 1, 0"%sFB)
stamp("rank done")
a("s_cmp_eq_u32 s%d, 0"%sFB, "s_cbranch_scc1 L_FAST")
a("v_mov_b32 v6, 0xff800000", "v_mov_b32 v7, v%d"%vL16, "s_mov_b32 s%d, 64"%sCNT)
a.label("L_MAXP")
a("ds_read_b128 %s, v7"%vr(KF[0],4), "v_add_u32 v7, 2048, v7", "s_waitcnt lgkmcnt(0)", mfma32(S[0],KF[0],vQ,None))
for i in range(0,16,2): a("v_max3_f32 v6, v%d, v%d, v6"%(S[0]+i,S[0]+i+1))
a("s_sub_u32 s%d, s%d, 1"%(sCNT,sCNT), "s_cmp_lg_u32 s%d, 0"%sCNT, "s_cbranch_scc1 L_MAXP")
a("v_mov_b32 v7, v6", "v_permlane32_swap_b32 v6, v7", "v_max_f32 v6, v6, v7")
for i in range(16): a("v_sub_f32 v%d, 0, v6"%(NEGM+i), "v_mov_b32 v%d, 0"%(O+i))
run(0,16,4,0)
a("s_branch L_ATT_DONE")
a.label("L_FAST")
run(16,12,SW2,NOJOB if '--nojobs' in sys.argv else 0)
a.label("L_ATT_DONE")
stamp("att done")
a("s_setprio 3")
a("s_lshl_b32 s75, s%d, 3"%sH, "s_add_u32 s75, s75, s%d"%sQB, "s_lshl_b32 s75, s75, 3", "s_add_u32 s75, s75, s%d"%sW, "s_lshl_b32 s75, s75, 10", "s_add_u32 s75, s75, 0x%x"%WS_O)
a("s_lshl_b32 s76, s%d, 3"%sQB, "s_add_u32 s76, s76, s%d"%sW, "s_lshl_b32 s76, s76, 5", "s_add_u32 s76, s76, s%d"%sH, "s_lshl_b32 s76, s76, 2", "s_add_u32 s76, s76, 0x%x"%WS_FO)
a("v_rcp_f32 v6, v%d"%(O+8), "v_mov_b32 v8, s%d"%sNONCE)
for i in range(8): a("v_mul_f32 v%d, v%d, v6"%(O+i,O+i))
for i in range(4): a("v_cvt_pk_bf16_f32 v%d, v%d, v%d"%(O+i,O+2*i,O+2*i+1))
a("buffer_store_dwordx4 %s, v%d, %s, s75 offen sc1"%(vr(O,4),vL16,sr(sWS,4)))
FG=ST; FU=ST+16; FX=ST+32; FD=ST+40
vSL=S[1]; vSH=S[1]+1; BB=S[0]; DG=S[1]+4; DU=S[1]+8; vSELT=S[1]+12
def expand(dst,src):
    a("v_perm_b32 v%d, v%d, v%d, v%d"%(dst,src,src,vSL), "v_perm_b32 v%d, v%d, v%d, v%d"%(dst+1,src,src,vSH),
      "v_perm_b32 v%d, v%d, v%d, v%d"%(dst+2,src+1,src+1,vSL), "v_perm_b32 v%d, v%d, v%d, v%d"%(dst+3,src+1,src+1,vSH))
a("s_cmp_eq_u32 s%d, 0"%sFFN, "s_cbranch_scc1 L_NOFFN1")
a("v_and_b32 v6, 1, v1", "v_cmp_eq_u32 vcc, 1, v6", "v_mov_b32 v7, 0x0c0c0100", "v_mov_b32 v9, 0x01000c0c", "v_cndmask_b32 v%d, v7, v9, vcc"%vSL,
  "v_mov_b32 v7, 0x0c0c0302", "v_mov_b32 v9, 0x03020c0c", "v_cndmask_b32 v%d, v7, v9, vcc"%vSH)
for s_ in range(4): expand(BB+4*s_,FX+2*s_)
for s_ in range(4): a(mfma16(DG,FG+4*s_,BB+4*s_,None if s_==0 else DG), mfma16(DU,FU+4*s_,BB+4*s_,None if s_==0 else DU))
a("s_lshl_b32 s77, s%d, 11"%sW, "s_add_u32 s77, s77, %d"%L_BOUNCE, "v_add_u32 v6, s77, v%d"%vL16)
a("ds_write_b128 v6, %s"%vr(DG,4), "ds_write_b128 v6, %s offset:1024"%vr(DU,4))
a.label("L_NOFFN1")
a("s_mov_b64 exec, 1", "s_waitcnt vmcnt(0)", "buffer_store_dword v8, off, %s, s76 sc1"%sr(sWS,4), "s_mov_b64 exec, -1")
a("s_setprio 0")
stamp("O pub")
vP2=WO-1
a("v_lshlrev_b32 v%d, 3, v1"%vP2, "s_mov_b32 s79, 0x%x"%WS_SEL)
poll_issue(vSELT,2,vP2,"s79",8)
a("s_waitcnt lgkmcnt(0)", "s_barrier")
stamp("X")
a("s_cmp_eq_u32 s%d, 0"%sFFN, "s_cbranch_scc1 L_NOFFN2")
a("s_cmp_ge_u32 s%d, 4"%sW, "s_cbranch_scc1 L_FFN_B")
a("v_lshlrev_b32 v6, 2, v0", "v_add_u32 v6, %d, v6"%L_BOUNCE)
for w_ in range(8): a("ds_read_b32 v%d, v6 offset:%d"%(BB+w_,w_*2048), "ds_read_b32 v%d, v6 offset:%d"%(BB+8+w_,w_*2048+1024))
a("v_bfe_u32 v7, v0, 3, 3", "v_lshlrev_b32 v7, 6, v7", "v_bfe_u32 v8, v0, 6, 2", "v_lshl_add_u32 v7, v8, 4, v7", "v_and_b32 v8, 3, v0", "v_lshl_add_u32 v7, v8, 2, v7",
  "v_bfe_u32 v8, v0, 2, 1", "v_lshl_add_u32 v7, v8, 1, v7", "v_add_u32 v7, %d, v7"%L_H)
a("s_waitcnt lgkmcnt(0)")
for w_ in range(1,8): a("v_add_f32 v%d, v%d, v%d"%(BB,BB,BB+w_), "v_add_f32 v%d, v%d, v%d"%(BB+8,BB+8,BB+8+w_))
bf16r(BB,BB); bf16r(BB+8,BB+8)
a("v_mul_f32 v8, 0x%x, v%d"%(f2u(-LOG2E),BB), "v_exp_f32 v8, v8", "v_add_f32 v8, 1.0, v8", "v_rcp_f32 v8, v8", "v_mul_f32 v8, v8, v%d"%BB)
bf16r(8,8)
a("v_mul_f32 v8, v8, v%d"%(BB+8), "v_cvt_pk_bf16_f32 v8, v8, v8", "ds_write_b16 v7, v8")
a.label("L_FFN_B")
a("v_bfe_u32 v6, v1, 1, 3", "v_lshlrev_b32 v8, 11, v6", "v_lshlrev_b32 v6, 6, v6", "v_lshrrev_b32 v7, 4, v1", "v_lshl_add_u32 v6, v7, 3, v6", "v_add_u32 v6, %d, v6"%L_H)
a("v_and_b32 v9, 1, v1", "v_lshl_add_u32 v8, v9, 10, v8", "v_lshl_add_u32 v8, v7, 4, v8")
a("s_lshl_b32 s76, s2, 14", "s_lshl_b32 s77, s%d, 7"%sW, "s_add_u32 s76, s76, s77", "s_add_u32 s76, s76, 0x%x"%WS_PART)
a("s_waitcnt lgkmcnt(0)", "s_barrier")
a("ds_read_b64 %s, v6"%vr(FX,2), "ds_read_b64 %s, v6 offset:32"%vr(FX+2,2), "s_waitcnt lgkmcnt(0)")
for u in range(2): expand(BB+4*u,FX+2*u)
for u in range(2): a(mfma16(DG,FD+4*u,BB+4*u,None if u==0 else DG), mfma16(DU,FD+8+4*u,BB+4*u,None if u==0 else DU))
a("buffer_store_dwordx4 %s, v8, %s, s76 offen sc1"%(vr(DG,4),sr(sWS,4)), "buffer_store_dwordx4 %s, v8, %s, s76 offen offset:64 sc1"%(vr(DU,4),sr(sWS,4)))
a("s_lshr_b32 s76, s%d, 1"%sW, "s_mul_i32 s76, s76, 448", "s_lshl_b32 s77, s2, 3", "s_add_u32 s76, s76, s77", "s_and_b32 s77, s%d, 1"%sW, "s_lshl_b32 s77, s77, 2", "s_add_u32 s76, s76, s77", "s_add_u32 s76, s76, 0x%x"%WS_FF)
a("v_mov_b32 v8, s%d"%sNONCE, "s_mov_b64 exec, 1", "s_waitcnt vmcnt(0)", "buffer_store_dword v8, off, %s, s76 sc1"%sr(sWS,4), "s_mov_b64 exec, -1")
a.label("L_NOFFN2")
stamp("ffn done")
poll_check(vSELT,2,vP2,"s79",8,3)
a("s_lshl_b32 s76, s%d, 3"%sQB, "s_add_u32 s76, s76, s%d"%sTT)
a("v_bfe_u32 v6, v%d, 5, 6"%(vSELT+1), "s_mov_b64 exec, 0xff", "v_cmp_eq_u32 vcc, s76, v6", "s_mov_b64 exec, -1", "s_mov_b32 s98, vcc_lo")
a("s_lshl_b32 s77, s76, 7", "s_lshl_b32 s78, s%d, 4"%sW, "s_add_u32 s77, s77, s78", "s_add_u32 s77, s77, 0x%x"%WS_FO, "v_lshlrev_b32 v6, 2, v1")
poll(ST,1,6,"s77",4,4)
stamp("poll O")
a("s_lshl_b32 s77, s%d, 18"%sW, "s_lshl_b32 s78, s76, 10", "s_add_u32 s77, s77, s78", "s_add_u32 s77, s77, 0x%x"%WS_O)
for i in range(4):
    a("buffer_load_dwordx4 %s, v%d, %s, s77 offen sc1"%(vr(ST+4*i,4),vL16,sr(sWS,4)))
    if i<3: a("s_add_u32 s77, s77, 0x10000")
a("s_cmp_eq_u32 s98, 0", "s_cbranch_scc1 L_NOY")
a("s_mul_i32 s77, s%d, 448"%sCG, "s_add_u32 s77, s77, 0x%x"%WS_FF)
poll(S[0],2,vP2,"s77",56,5,tags=(0,1))
a("v_lshrrev_b32 v6, 5, v0", "v_lshlrev_b32 v6, 14, v6", "v_bfe_u32 v7, v0, 4, 1", "v_lshl_add_u32 v6, v7, 10, v6", "v_and_b32 v8, 15, v0", "v_lshl_add_u32 v6, v8, 4, v6")
a("v_and_b32 v7, 31, v1", "v_lshlrev_b32 v7, 4, v7", "s_lshl_b32 s77, s%d, 9"%sW, "s_add_u32 s77, s77, %d"%L_Y, "v_add_u32 v7, s77, v7")
a("s_mov_b32 s97, s98")
a.label("L_YLOOP")
a("s_ff1_i32_b32 s96, s97", "s_bitset0_b32 s97, s96")
a("s_lshl_b32 s77, s96, 11", "s_lshl_b32 s78, s%d, 8"%sCG, "s_add_u32 s77, s77, s78", "s_add_u32 s77, s77, 0x%x"%WS_PART)
for i in range(4): a("v_mov_b32 v%d, 0"%(S[0]+12+i))
for i in range(3):
    a("buffer_load_dwordx4 %s, v6, %s, s77 offen sc1"%(vr(S[0]+4*i,4),sr(sWS,4)), "s_add_u32 s77, s77, 0x40000")
a("s_cmp_ge_u32 s%d, 4"%sW, "s_cbranch_scc1 L_Y3", "buffer_load_dwordx4 %s, v6, %s, s77 offen sc1"%(vr(S[0]+12,4),sr(sWS,4)))
a.label("L_Y3")
a("s_lshl_b32 s78, s96, 12", "v_add_u32 v8, s78, v7", "s_waitcnt vmcnt(0)")
for i in range(4): a("v_add_f32 v%d, v%d, v%d"%(S[0]+i,S[0]+i,S[0]+4+i), "v_add_f32 v%d, v%d, v%d"%(S[0]+8+i,S[0]+8+i,S[0]+12+i))
for i in range(4): a("v_add_f32 v%d, v%d, v%d"%(S[0]+i,S[0]+i,S[0]+8+i))
for i in range(4): a("v_mov_b32 v%d, v%d"%(S[0]+4+i,S[0]+i))
for i in range(4): a("v_permlane32_swap_b32 v%d, v%d"%(S[0]+i,S[0]+4+i))
for i in range(4): a("v_add_f32 v%d, v%d, v%d"%(S[0]+i,S[0]+i,S[0]+4+i))
a("ds_write_b128 v8, %s"%vr(S[0],4))
a("s_cmp_lg_u32 s97, 0", "s_cbranch_scc1 L_YLOOP")
a.label("L_NOY")
a("s_lshl_b32 s77, s%d, 12"%sW, "v_add_u32 v6, s77, v%d"%vL16)
for i in range(4):
    a("s_waitcnt vmcnt(%d)"%(3-i), "ds_write_b128 v6, %s offset:%d"%(vr(ST+4*i,4),1024*i))
a("s_lshr_b32 s77, s%d, 2"%sW, "s_lshl_b32 s77, s77, 14", "v_add_u32 v6, s77, v%d"%vL16)
a("s_waitcnt lgkmcnt(0)", "s_barrier")
stamp("Y")
OF=ST
for i in range(8): a("ds_read_b128 %s, v6 offset:%d"%(vr(OF+4*i,4),1024*i))
a("s_or_b32 s77, s2, s%d"%sW, "s_cmp_lg_u32 s77, 0", "s_cbranch_scc1 L_NON")
a("v_mov_b32 v8, s%d"%sNONCE, "s_mov_b64 exec, 1", "buffer_store_dword v8, off, %s, 0"%sr(sWS,4), "s_mov_b64 exec, -1")
a.label("L_NON")
for i in range(16):
    a("s_waitcnt lgkmcnt(%d)"%(7 if i<8 else 15-i))
    a(mfma32(O,WO+4*i,OF+4*(i&7),None if i==0 else O))
    if i<8: a("ds_read_b128 %s, v6 offset:%d"%(vr(OF+4*i,4),1024*(i+8)))
a("s_cmp_eq_u32 s98, 0", "s_cbranch_scc1 L_NOG")
a("v_and_b32 v7, 15, v0", "v_lshlrev_b32 v7, 4, v7", "v_add_u32 v7, %d, v7"%L_Y, "v_lshrrev_b32 v8, 4, v0")
a.label("L_GLOOP")
a("s_ff1_i32_b32 s96, s98", "s_bitset0_b32 s98, s96", "v_readlane_b32 s77, v%d, s96"%(vSELT+1))
a("s_and_b32 s78, s77, 31", "s_and_b32 s77, s77, 0xffff0000", "s_lshl_b32 s79, s96, 12", "v_add_u32 v9, s79, v7")
a("v_cmp_eq_u32 vcc, s78, v8", "s_and_saveexec_b64 s[%d:%d], vcc"%(sU[0],sU[1]), "s_cbranch_execz L_GSKIP")
Y0=S[0]; Y1=ST
for w_ in range(4): a("ds_read_b128 %s, v9 offset:%d"%(vr(Y1+8*w_,4),512*w_), "ds_read_b128 %s, v9 offset:%d"%(vr(Y1+8*w_+4,4),512*w_+256))
a("s_waitcnt lgkmcnt(0)")
for i in range(8): a("v_add_f32 v%d, v%d, v%d"%(Y0+i,Y1+i,Y1+8+i), "v_add_f32 v%d, v%d, v%d"%(Y0+8+i,Y1+16+i,Y1+24+i))
for w_ in range(4): a("ds_read_b128 %s, v9 offset:%d"%(vr(Y1+8*w_,4),512*(w_+4)), "ds_read_b128 %s, v9 offset:%d"%(vr(Y1+8*w_+4,4),512*(w_+4)+256))
for i in range(8): a("v_add_f32 v%d, v%d, v%d"%(Y0+i,Y0+i,Y0+8+i))
a("s_waitcnt lgkmcnt(0)")
for w_ in range(4):
    for i in range(8): a("v_add_f32 v%d, v%d, v%d"%(Y0+i,Y0+i,Y1+8*w_+i))
for i in range(4): a("v_cvt_pk_bf16_f32 v%d, v%d, v%d"%(Y0+8+i,Y0+i,Y0+4+i))
for i in range(4): unpack(Y0+2*i,Y0+2*i+1,Y0+8+i)
for i in range(8): a("v_mul_f32 v%d, s77, v%d"%(Y0+i,Y0+i))
for i in range(4): a("v_cvt_pk_bf16_f32 v%d, v%d, v%d"%(Y0+8+i,Y0+2*i,Y0+2*i+1))
for i in range(4): unpack(Y0+2*i,Y0+2*i+1,Y0+8+i)
for i in range(4): unpack(vG+2*i,vG+2*i+1,vXN+i)
for i in range(8): a("v_add_f32 v%d, v%d, v%d"%(vG+i,vG+i,Y0+i))
for i in range(4): a("v_cvt_pk_bf16_f32 v%d, v%d, v%d"%(Y0+8+i,vG+2*i,vG+2*i+1))
for i in range(4): unpack(vG+2*i,vG+2*i+1,Y0+8+i)
silu8(Y0)
a.label("L_GSKIP")
a("s_mov_b64 exec, -1", "s_cmp_lg_u32 s98, 0", "s_cbranch_scc1 L_GLOOP")
a.label("L_NOG")
a("v_and_b32 v6, 31, v1", "v_mul_u32_u24 v6, %d, v6"%SX_ROW, "v_lshrrev_b32 v7, 5, v1", "v_lshl_add_u32 v6, v7, 4, v6",
  "s_lshr_b32 s77, s%d, 2"%sW, "s_mul_i32 s77, s77, %d"%SX_HALF, "s_and_b32 s78, s%d, 3"%sW, "s_lshl_b32 s78, s78, 7", "s_add_u32 s77, s77, s78", "s_add_u32 s77, s77, %d"%L_SX, "v_add_u32 v6, s77, v6")
a("v_lshrrev_b32 v7, 4, v0", "v_mul_u32_u24 v7, %d, v7"%SX_ROW, "v_and_b32 v8, 15, v0", "v_lshl_add_u32 v7, v8, 5, v7", "v_add_u32 v7, %d, v7"%L_SX)
for g in range(4): a("ds_write_b128 v6, %s offset:%d"%(vr(O+4*g,4),32*g))
a("s_waitcnt lgkmcnt(0)", "s_barrier")
E=S[0]
a("ds_read_b128 %s, v7"%vr(E,4), "ds_read_b128 %s, v7 offset:16"%vr(E+4,4), "ds_read_b128 %s, v7 offset:%d"%(vr(E+8,4),SX_HALF), "ds_read_b128 %s, v7 offset:%d"%(vr(E+12,4),SX_HALF+16))
a("s_waitcnt lgkmcnt(0)")
for i in range(8): a("v_add_f32 v%d, v%d, v%d"%(E+i,E+i,E+8+i))
for i in range(4): a("v_cvt_pk_bf16_f32 v%d, v%d, v%d"%(E+8+i,E+2*i,E+2*i+1))
for i in range(4): unpack(E+2*i,E+2*i+1,E+8+i)
for i in range(8): a("v_mul_f32 v%d, v%d, v%d"%(E+i,E+i,vG+i))
for i in range(4): a("v_cvt_pk_bf16_f32 v%d, v%d, v%d"%(E+8+i,E+2*i,E+2*i+1))
for i in range(4): unpack(E+2*i,E+2*i+1,E+8+i)
for i in range(8): a("v_add_f32 v%d, v%d, v%d"%(E+i,E+i,vXF32+i))
for i in range(4): a("v_cvt_pk_bf16_f32 v%d, v%d, v%d"%(E+8+i,E+2*i,E+2*i+1))
a("buffer_store_dwordx4 %s, v%d, %s, s%d offen"%(vr(E+8,4),vPC,sr(sOUT,4),sPC))
if PROF:
    stamp("end")
    a("s_lshl_b32 s76, s2, 3", "s_add_u32 s76, s76, s%d"%sW, "s_lshl_b32 s76, s76, 8", "s_add_u32 s76, s76, 0x%x"%WS_DBG, "v_lshlrev_b32 v6, 2, v1",
      "buffer_store_dword v%d, v6, %s, s76 offen"%(vSTAMP,sr(sWS,4)))
a.label("L_END")
a("s_endpgm")

def ex(r): return "v_exp_f32 v%d, v%d"%(r,r)
def cv(d,s_): return "v_cvt_pk_bf16_f32 v%d, v%d, v%d"%(d,s_,s_+1)
vKc=6; vVc=7
def tile(t):
    p=t&1; cur=S[p]; prev=S[1-p]
    e=[ex(cur+i) for i in range(16)]; c=[cv(P+i,cur+2*i) for i in range(8)]
    return ["s_waitcnt lgkmcnt(0)", e[0], e[1], cv(P+7,prev+14), mfma32(prev,KF[1-p],vQ,NEGM),
        "ds_read_b128 %s, v%d offset:%d"%(vr(KF[p],4),vKc,(t+2)*2048), e[2], e[3], mfma32(O,VB[1-p],P+4,O),
        "s_mov_b64 exec, %s"%sr(sVMASK,2),
        "ds_read_b128 %s, v%d offset:%d"%(vr(VA[1-p],4),vVc,(t+1)*2048), "ds_read_b128 %s, v%d offset:%d"%(vr(VB[1-p],4),vVc,(t+1)*2048+512),
        "s_mov_b64 exec, -1",
        c[0],e[4],e[5],c[1],e[6],e[7],c[2],e[8],e[9],c[3],e[10],e[11], mfma32(O,VA[p],P,O), c[4],e[12],e[13],c[5],e[14],e[15],c[6]]
a(".p2align 6")
a.label("L_RUN")
a("v_add_u32 v%d, s%d, v%d"%(vKc,sU[0],vKA), "v_add_u32 v%d, s%d, v%d"%(vVc,sU[0],vVA))
a("ds_read_b128 %s, v%d"%(vr(KF[0],4),vKc), "ds_read_b128 %s, v%d offset:2048"%(vr(KF[1],4),vKc))
a("s_mov_b64 exec, %s"%sr(sVMASK,2), "ds_read_b128 %s, v%d"%(vr(VA[0],4),vVc), "ds_read_b128 %s, v%d offset:512"%(vr(VB[0],4),vVc), "s_mov_b64 exec, -1")
for r in (P+4,P+5,P+6,S[1]+14,S[1]+15): a("v_mov_b32 v%d, 0"%r)
a("s_waitcnt lgkmcnt(3)", mfma32(S[0],KF[0],vQ,NEGM), "s_nop 11")
a(".p2align 6")
a.label("L_RUN_LOOP")
body=[]
for t in range(4): body+=tile(t)
assert not check_seq(body+body), check_seq(body+body)
a(*body)
a("v_add_u32 v%d, 0x2000, v%d"%(vKc,vKc), "v_add_u32 v%d, 0x2000, v%d"%(vVc,vVc))
a("s_cmp_lg_u32 s%d, %d"%(sJOB,NOJOB), "s_cbranch_scc1 L_JOBS")
a.label("L_JOB_RET")
if "--iter" in sys.argv:
    a("s_memtime s[100:101]", "s_waitcnt lgkmcnt(0)", "s_mov_b32 m0, s7", "v_writelane_b32 v%d, s100, m0"%vSTAMP, "s_add_u32 s7, s7, 1")
a("s_sub_u32 s%d, s%d, 1"%(sCNT,sCNT), "s_cmp_lg_u32 s%d, s%d"%(sCNT,sSW), "s_cbranch_scc1 L_NOSW", "s_setprio 0")
a.label("L_NOSW")
a("s_cmp_lg_u32 s%d, 0"%sCNT, "s_cbranch_scc1 L_RUN_LOOP")
a(cv(P+7,S[1]+14), "s_nop 1", mfma32(O,VB[1],P+4,O), "s_waitcnt lgkmcnt(0)", "s_setpc_b64 %s"%sr(sRET,2))
a.label("L_JOBS")
def dispatch(lo,hi):
    if hi-lo==1: a("s_branch L_JOB%d"%lo); return
    mid=(lo+hi)//2; L=a.uid("L_JD")
    a("s_cmp_ge_u32 s%d, %d"%(sJOB,mid), "s_cbranch_scc1 %s"%(L if hi-mid>1 else "L_JOB%d"%mid))
    dispatch(lo,mid)
    if hi-mid>1: a.label(L); dispatch(mid,hi)
a("s_cmp_ge_u32 s%d, %d"%(sJOB,JOBKV), "s_cbranch_scc1 L_JOBF")
dispatch(0,12)
def job_end(nxt): a("s_mov_b32 s%d, %d"%(sJOB,nxt), "s_branch L_JOB_RET")
def wo_round(j):
    a("ds_write_b128 v8, %s"%vr(WO+8*j,4), "ds_write_b128 v8, %s offset:1024"%vr(WO+8*j+4,4))
    for u in range(2):
        r=WO+8*j+4*u
        a("ds_read_b64_tr_b16 %s, v9 offset:%d"%(vr(r,2),u*1024), "ds_read_b64_tr_b16 %s, v9 offset:%d"%(vr(r+2,2),u*1024+512))
def wo_loads(j):
    for i in range(4):
        a("buffer_load_dwordx4 %s, v8, %s, s93 offen"%(vr(WO+16*j+4*i,4),sr(sWO,4)), "s_add_u32 s93, s93, 16384")
def ffn_loads(j):
    L=a.uid("L_JF")
    a("s_cmp_eq_u32 s%d, 0"%sFFN, "s_cbranch_scc1 %s"%L)
    a("s_mul_i32 s94, s%d, %d"%(sW,64*3584), "s_lshl_b32 s95, s2, 6", "s_add_u32 s94, s94, s95", "s_add_u32 s94, s94, %d"%(j*16*3584))
    for jj in range(4):
        a("buffer_load_dword v%d, v9, %s, s94 offen"%(FG+4*j+jj,sr(sWG,4)), "buffer_load_dword v%d, v9, %s, s94 offen"%(FU+4*j+jj,sr(sWU,4)))
        if jj<3: a("s_add_u32 s94, s94, 3584")
    jt,u=j&1,j>>1
    a("s_lshl_b32 s94, s2, 15", "s_lshl_b32 s95, s%d, 7"%sW, "s_add_u32 s94, s94, s95", "s_add_u32 s94, s94, %d"%(u*16384))
    for jj in range(4): a("buffer_load_dword v%d, v%d, %s, s94 offen offset:%d"%(FD+8*jt+4*u+jj,FX,sr(sWD,4),jj*1024+jt*64))
    a.label(L)
def wait2(n_plain,n_ffn):
    L=a.uid("L_JW"); E=a.uid("L_JE")
    a("s_cmp_eq_u32 s%d, 0"%sFFN, "s_cbranch_scc1 %s"%L, "s_waitcnt vmcnt(%d)"%n_ffn, "s_branch %s"%E); a.label(L); a("s_waitcnt vmcnt(%d)"%n_plain); a.label(E)
a.label("L_JOB0")
a("v_lshrrev_b32 v8, 2, v1", "v_lshlrev_b32 v8, 10, v8", "v_and_b32 v9, 3, v1", "v_lshl_add_u32 v8, v9, 4, v8")
a("s_movk_i32 s94, %d"%(4*3584), "v_lshrrev_b32 v%d, 4, v1"%FX, "v_mul_lo_u32 v9, v%d, s94"%FX, "v_and_b32 v%d, 15, v1"%(FX+1), "v_lshl_add_u32 v9, v%d, 2, v9"%(FX+1),
  "v_lshlrev_b32 v%d, 12, v%d"%(FX,FX), "v_lshl_add_u32 v%d, v%d, 2, v%d"%(FX,FX+1,FX))
a("s_lshr_b32 s93, s%d, 2"%sW, "s_lshl_b32 s93, s93, 18", "s_lshl_b32 s95, s%d, 8"%sCG, "s_add_u32 s93, s93, s95", "s_and_b32 s95, s%d, 3"%sW, "s_lshl_b32 s95, s95, 6", "s_add_u32 s93, s93, s95")
wo_loads(0); ffn_loads(0); job_end(1)
for j in (1,2,3):
    a.label("L_JOB%d"%j); wo_loads(j); ffn_loads(j); job_end(j+1)
a.label("L_JOB4")
a("s_lshl_b32 s93, s%d, 11"%sW, "s_add_u32 s93, s93, %d"%L_BOUNCE, "v_add_u32 v8, s93, v%d"%vL16)
a("v_and_b32 v9, 3, v1", "v_lshlrev_b32 v9, 3, v9", "v_bfe_u32 v%d, v1, 4, 1"%FX, "v_lshl_add_u32 v9, v%d, 5, v9"%FX, "v_bfe_u32 v%d, v1, 2, 2"%FX, "v_lshl_add_u32 v9, v%d, 6, v9"%FX,
  "v_lshrrev_b32 v%d, 5, v1"%FX, "v_lshl_add_u32 v9, v%d, 8, v9"%FX, "v_add_u32 v9, s93, v9")
wait2(12,60); wo_round(0); job_end(5)
a.label("L_JOB5"); wo_round(1); job_end(6)
a.label("L_JOB6"); wait2(8,44); wo_round(2); job_end(7)
a.label("L_JOB7"); wo_round(3)
a("v_lshlrev_b32 v%d, 3, v1"%(FX+2), "s_mov_b32 s94, 0x%x"%WS_SEL)
poll_issue(FX,2,FX+2,"s94",8)
job_end(8)
a.label("L_JOB8"); wait2(5,29); wo_round(4); job_end(9)
a.label("L_JOB9"); wo_round(5)
L=a.uid("L_J9")
a("s_cmp_eq_u32 s%d, 0"%sFFN, "s_cbranch_scc1 %s"%L)
a("v_lshlrev_b32 v%d, 3, v1"%(FX+2), "s_mov_b32 s94, 0x%x"%WS_SEL)
poll_check(FX,2,FX+2,"s94",8,6,tmp=(FX+4,FX+5))
a("v_bfe_u32 v%d, v1, 1, 3"%(FX+7), "v_lshlrev_b32 v%d, 10, v%d"%(FX+7,FX+7), "v_lshrrev_b32 v%d, 4, v1"%(FX+6), "v_lshl_add_u32 v%d, v%d, 3, v%d"%(FX+7,FX+6,FX+7))
a("s_lshl_b32 s94, s%d, 7"%sW, "s_add_u32 s94, s94, 0x%x"%WS_XSEL)
for s_ in range(4): a("buffer_load_dwordx2 %s, v%d, %s, s94 offen offset:%d sc1"%(vr(FX+2*s_,2),FX+7,sr(sWS,4),32*s_))
a.label(L)
job_end(10)
a.label("L_JOB10"); wait2(1,4); wo_round(6); job_end(11)
a.label("L_JOB11"); a("s_waitcnt vmcnt(0)"); wo_round(7); job_end(NOJOB)
a.label("L_JOBF")
a("s_cmp_eq_u32 s%d, %d"%(sJOB,JOBKV+1), "s_cbranch_scc1 L_JOBF1", "s_cmp_eq_u32 s%d, %d"%(sJOB,JOBKV+2), "s_cbranch_scc1 L_JOBF2")
fetch_flags(True); fetch_tiles((2,3)); job_end(JOBKV+1)
a.label("L_JOBF1"); fetch_tiles((4,5)); job_end(JOBKV+2)
a.label("L_JOBF2"); fetch_tiles((6,7)); fetch_keys(); job_end(NOJOB)

lines,npad = fix_hazards(a.lines, verbose='--v' in sys.argv)
hdr = open('recurrent_scan__mha_block__moe_arch_mod__prompt.s.ref').read().split('; Override launch')[0]
txt = hdr + "; @launch grid=(256,1,1) block=(512,1,1) lds=%d\n"%LDS_BYTES
txt += '.amdgcn_target "amdgcn-amd-amdhsa--gfx950"\n.text\n.globl %s\n.p2align 8\n.type %s,@function\n'%(KNAME,KNAME)
txt += "\n".join(("" if l.endswith(':') else "    ")+l for l in lines) + "\n"
txt += '''.section .rodata,"a"
.p2align 6
.amdhsa_kernel %s
  .amdhsa_next_free_vgpr 256
  .amdhsa_next_free_sgpr 102
  .amdhsa_accum_offset 256
  .amdhsa_group_segment_fixed_size 0
  .amdhsa_kernarg_size 88
  .amdhsa_user_sgpr_count 2
  .amdhsa_user_sgpr_kernarg_segment_ptr 1
  .amdhsa_system_sgpr_workgroup_id_x 1
  .amdhsa_float_denorm_mode_32 3
.end_amdhsa_kernel
'''%KNAME
open(OUT,'w').write(txt)
print("wrote",OUT,"lines",len(lines),"auto pads",npad)
```
